```python
import torch

def _softmax(x, axis=-1):
    return torch.softmax(x, dim=axis)
def _gelu(x):
    return torch.nn.functional.gelu(x, approximate="tanh")
def _silu(x):
    return torch.nn.functional.silu(x)
def _sigmoid(x):
    return torch.sigmoid(x)
def _layernorm(x, axis=-1, eps=1e-5):
    m = x.mean(dim=axis, keepdim=True)
    v = x.var(dim=axis, keepdim=True, unbiased=False)
    return (x - m) / torch.sqrt(v + eps)
def _scatter_add(tgt, idx, src, axis=0):
    return tgt.clone().index_add_(axis, idx, src)
def _segment_sum(src, seg, n):
    out = torch.zeros((n,) + src.shape[1:], dtype=src.dtype)
    return out.index_add_(0, seg, src)
def _pad(x, pw):
    flat = tuple(v for pair in reversed(pw) for v in pair)
    return torch.nn.functional.pad(x, flat)

kernel_name = 'gated_mix__spectral_gfnet__dense_activation_mish__prompt'

def setup_inputs():

    _w = (lambda a: (lambda t: t.to(torch.bfloat16) if t.is_floating_point() else t)(torch.as_tensor(a)))
    def _A_setup():
        B, S, D = 1, 2048, 512
        Df = D // 2 + 1
        return {
            "x": _w((lambda *s: torch.randn(*s, dtype=torch.bfloat16) * 0.05)(B, S, D)),
            "w_r": _w((lambda *s: torch.randn(*s, dtype=torch.bfloat16) * 1.6)(S, Df) * 0.02),
            "w_i": _w((lambda *s: torch.randn(*s, dtype=torch.bfloat16) * 1.6)(S, Df) * 0.02),
        }
    _A_in = _A_setup()

    def _B_setup():
        B, S, D, F = 1, 2048, 512, 1792
        return {
            "x": _w((lambda *s: torch.randn(*s, dtype=torch.bfloat16) * 0.05)(B, S, D)),
            "w1": _w((lambda *s: torch.randn(*s, dtype=torch.bfloat16) * 6.4)(D, F) * (D ** -0.5)),
            "b1": _w((lambda *s: torch.randn(*s, dtype=torch.bfloat16) * 0.05)(F)),
            "w2": _w((lambda *s: torch.randn(*s, dtype=torch.bfloat16) * 0.05)(F, D) * (F ** -0.5)),
        }
    _B_in = _B_setup()

    return {
        "A_x": _A_in["x"],
        "A_w_r": _A_in["w_r"],
        "A_w_i": _A_in["w_i"],
        "B_x": _B_in["x"],
        "B_w1": _B_in["w1"],
        "B_b1": _B_in["b1"],
        "B_w2": _B_in["w2"],
        "gate_w": _w((lambda *s: torch.randn(*s, dtype=torch.bfloat16) * 0.05)(512) * 16.0),
    }

def reference(A_x, A_w_r, A_w_i, B_x, B_w1, B_b1, B_w2, gate_w):
    def _A_ref(x, w_r, w_i):
        B, S, D = x.shape
        X = (lambda x, axes=(-2,-1): torch.fft.rfft2(x.float(), dim=axes))(x, axes=(-2, -1))
        W = w_r + 1j * w_i
        X = X * W
        y = (lambda x, s, axes=(-2,-1): torch.fft.irfft2(x, s=s, dim=axes).to(torch.bfloat16))(X, (S, D), axes=(-2, -1))
        return y

    def _B_ref(x, w1, b1, w2):
        h = torch.einsum("bsd,df->bsf", x, w1) + b1
        sp = torch.log1p(torch.exp(-torch.abs(h))) + torch.where(h > 0, h, torch.zeros_like(h))
        act = h * torch.tanh(sp)
        return torch.einsum("bsf,fd->bsd", act, w2)

    x = A_x
    g = _sigmoid((x * gate_w).sum(-1, keepdims=True))
    a = _A_ref(x, A_w_r, A_w_i)
    b = _B_ref(x, B_w1, B_b1, B_w2)
    return g * a + (1 - g) * b
```

```python
import re, copy

TRANS = ('v_exp_f32','v_log_f32','v_rcp_f32','v_rsq_f32','v_sqrt_f32','v_sin_f32','v_cos_f32','v_rcp_iflag_f32')

def parse_reg(tok):
    tok = tok.strip()
    tok = tok.lstrip('-')
    if tok.startswith('abs(') or tok.startswith('|'):
        tok = tok.replace('abs(','').replace(')','').replace('|','')
    m = re.fullmatch(r'([vas])(\d+)', tok)
    if m: return [(m.group(1), int(m.group(2)))]
    m = re.fullmatch(r'([vas])\[(\d+):(\d+)\]', tok)
    if m: return [(m.group(1), i) for i in range(int(m.group(2)), int(m.group(3))+1)]
    if tok == 'vcc': return [('s','vcc0'),('s','vcc1')]
    if tok == 'vcc_lo': return [('s','vcc0')]
    if tok == 'vcc_hi': return [('s','vcc1')]
    if tok == 'exec': return [('s','exec0'),('s','exec1')]
    if tok == 'exec_lo': return [('s','exec0')]
    if tok == 'exec_hi': return [('s','exec1')]
    if tok == 'm0': return [('s','m0')]
    return []

class Ins:
    __slots__=('text','op','ops','mods','defs','uses','cls','passes','srcC','ab','note','nstates')
    def __init__(self, text):
        self.text = text
        t = text.split(';')[0].strip()
        sp = t.split(None,1)
        self.op = sp[0]
        rest = sp[1] if len(sp)>1 else ''
        ops=[]; cur=''; depth=0
        for ch in rest:
            if ch in '[(': depth+=1
            if ch in '])': depth-=1
            if ch==',' and depth==0:
                ops.append(cur.strip()); cur=''
            else: cur+=ch
        if cur.strip(): ops.append(cur.strip())
        mods=''
        if ops:
            last=ops[-1].split(None,1)
            if len(last)>1:
                ops[-1]=last[0]; mods=last[1]
        self.ops=ops; self.mods=mods
        self.classify()
    def classify(self):
        op=self.op; ops=self.ops
        R=lambda i: parse_reg(ops[i]) if i<len(ops) else []
        allr=lambda lo: sum((parse_reg(o) for o in ops[lo:]),[])
        self.defs=[]; self.uses=[]; self.cls='other'; self.passes=0; self.srcC=[]; self.ab=[]; self.nstates=1
        if op=='s_nop':
            self.cls='nop'; self.nstates=int(ops[0],0)+1; return
        if op.startswith('v_mfma'):
            self.cls='mfma'
            self.passes = 8 if '32x32x16' in op else (4 if '16x16x32' in op else None)
            assert self.passes, op
            self.defs=R(0); self.ab=R(1)+R(2); self.srcC=R(3); self.uses=self.ab+self.srcC; return
        if op.startswith('v_cmp'):
            self.cls='valu'; self.defs=R(0); self.uses=allr(1); return
        if op=='v_writelane_b32':
            self.cls='valu'; self.defs=R(0); self.uses=allr(0); return
        if op in ('v_readfirstlane_b32','v_readlane_b32'):
            self.cls='valu'; self.defs=R(0); self.uses=allr(1); return
        if op.startswith('v_permlane') and 'swap' in op:
            self.cls='valu'; self.defs=R(0)+R(1); self.uses=R(0)+R(1); return
        if op.startswith('v_'):
            self.cls='valu'
            base=op.replace('_e32','').replace('_e64','').replace('_dpp','').replace('_sdwa','')
            if base in TRANS: self.cls='trans'
            self.defs=R(0); lo=1
            if base in ('v_add_co_u32','v_sub_co_u32','v_addc_co_u32','v_subb_co_u32','v_subrev_co_u32'):
                self.defs=R(0)+R(1); lo=2
            self.uses=allr(lo)
            if base in ('v_fmac_f32','v_dot2c_f32_bf16','v_pk_fmac_f16','v_writelane_b32'):
                self.uses+=R(0)
            if base=='v_cndmask_b32' and len(ops)==3: self.uses+=parse_reg('vcc')
            if '_dpp' in op or 'row_' in self.mods or 'quad_perm' in self.mods:
                self.uses+=R(0)
            if 'dst_sel' in self.mods and 'UNUSED_PRESERVE' in self.mods: self.uses+=R(0)
            return
        if op.startswith('ds_'):
            self.cls='ds'
            if op.startswith('ds_read') or op.startswith('ds_bpermute') or op.startswith('ds_permute') or op.startswith('ds_swizzle'):
                self.defs=R(0); self.uses=allr(1)
            else:
                self.uses=allr(0)
            return
        if op.startswith('buffer_') or op.startswith('global_'):
            self.cls='vmem'
            toks=self.mods.split()
            if op in ('buffer_wbl2','buffer_inv'): return
            if op.startswith('buffer_load') and 'lds' in toks:
                self.cls='vmem_lds'; self.uses=allr(0)+parse_reg('m0'); return
            if op.startswith('global_load_lds'):
                self.cls='vmem_lds'; self.uses=allr(0)+parse_reg('m0'); return
            if '_load' in op:
                self.defs=R(0); self.uses=allr(1)
                if 'd16' in op: self.uses+=R(0)
                return
            if 'atomic' in op:
                self.uses=allr(0)
                if 'sc0' in toks: self.defs=R(0)
                self.cls='vmem_st'; return
            self.cls='vmem_st'; self.uses=allr(0); return
        if op.startswith('s_load') or op.startswith('s_buffer_load') or op in('s_memtime','s_memrealtime'):
            self.cls='smem'; self.defs=R(0); self.uses=allr(1); return
        if op in ('s_waitcnt','s_barrier','s_endpgm','s_sleep','s_setprio','s_branch') or op.startswith('s_cbranch'):
            self.cls='ctl'
            if op in('s_cbranch_vccz','s_cbranch_vccnz'): self.uses=parse_reg('vcc')
            if op in('s_cbranch_execz','s_cbranch_execnz'): self.uses=parse_reg('exec')
            return
        if op.startswith('s_cmp') or op.startswith('s_bitcmp'):
            self.cls='salu'; self.uses=allr(0); return
        if op.startswith('s_'):
            self.cls='salu'; self.defs=R(0); self.uses=allr(1)
            if 'saveexec' in op: self.defs+=parse_reg('exec'); self.uses+=parse_reg('exec')
            if op in ('s_addk_i32','s_mulk_i32','s_cmov_b32','s_cmov_b64','s_bitset1_b32','s_bitset0_b32'): self.uses+=R(0)
            return
        raise ValueError('unknown op '+self.text)

def overlap(a,b):
    sa=set(a)
    return any(x in sa for x in b)

MF_VALU={4:8,8:12}
MF_COVL={4:6,8:10}
MF_WARC={4:3,8:7}

def need(p, c):
    n=0
    pv=[r for r in p.defs if r[0] in 'va']
    ps=[r for r in p.defs if r[0]=='s']
    cvalu = c.cls in ('valu','trans')
    if p.cls in ('valu','trans'):
        if c.cls=='mfma' and overlap(pv,c.uses): n=max(n,2)
        if cvalu:
            isdpp = ('_dpp' in c.op) or ('row_' in c.mods) or ('quad_perm' in c.mods)
            if isdpp and overlap(pv,c.uses): n=max(n,2)
            if c.op.startswith('v_permlane') and overlap(pv,c.uses): n=max(n,2)
            if c.op in('v_readfirstlane_b32','v_readlane_b32') and overlap(pv,c.uses): n=max(n,1)
            if ps and overlap(ps,c.uses):
                n=max(n,2)
                if c.op in('v_readlane_b32','v_writelane_b32'): n=max(n,4)
            if p.cls=='trans' and c.cls!='trans' and overlap(pv,c.uses): n=max(n,1)
            if (('dst_sel' in p.mods and 'dst_sel:DWORD' not in p.mods) or ('op_sel:' in p.mods and not p.op.startswith('v_pk'))) and overlap(pv,c.uses+c.defs): n=max(n,1)
        if c.cls=='mfma' and ps and overlap(ps,c.uses): n=max(n,2)
        if c.cls in('vmem','vmem_st','vmem_lds') and ps and overlap(ps,c.uses): n=max(n,5)
        if c.cls in('salu','ctl','smem') and ps and overlap(ps,c.uses): n=max(n,1)
    if p.op.startswith('v_dot'):
        if c.op==p.op:
            ab=parse_reg(c.ops[1])+parse_reg(c.ops[2])
            if overlap(pv,ab): n=max(n,3)
        elif overlap(pv,c.uses+c.defs): n=max(n,3)
    if p.cls=='mfma':
        P=p.passes
        if c.cls=='mfma':
            if overlap(p.defs,c.ab): n=max(n,MF_VALU[P])
            if overlap(p.defs,c.srcC):
                if not (c.srcC==p.defs and c.passes==P): n=max(n,MF_COVL[P])
            elif overlap(p.defs,c.defs): n=max(n,MF_COVL[P])
        elif cvalu:
            if overlap(p.defs,c.uses+c.defs): n=max(n,MF_VALU[P])
            if overlap(p.srcC,c.defs): n=max(n,MF_WARC[P])
        elif c.cls in('vmem','vmem_st','vmem_lds','ds'):
            if overlap(p.defs,c.uses+c.defs): n=max(n,MF_VALU[P])
            if overlap(p.srcC,c.defs): n=max(n,MF_WARC[P])
    if p.cls=='salu' and ('s','m0') in p.defs and c.cls=='vmem_lds': n=max(n,1)
    if p.cls=='vmem_st' and ('x4' in p.op or 'x3' in p.op):
        data=parse_reg(p.ops[0]) if p.op.startswith('buffer') else parse_reg(p.ops[1])
        if overlap(data,c.defs):
            n=max(n,2 if (cvalu or c.cls=='mfma') else 1)
    return n

class Prog:
    def __init__(self, name):
        self.name=name; self.items=[]; self._lab=0; self.warn=[]
    def __call__(self, s):
        for l in s.split('\n'):
            l=l.strip()
            if not l or l.startswith(';'): continue
            if l.endswith(':') and ' ' not in l: self.items.append(('label',l[:-1]))
            else: self.items.append(('ins',Ins(l)))
    def label(self, base='L'):
        self._lab+=1
        return '%s_%s%d'%(self.name, base, self._lab)
    def finalize(self, check_wait=True):
        items=self.items
        labels={it[1]:i for i,it in enumerate(items) if it[0]=='label'}
        out=[]
        hist=[]
        snaps={}
        def age(h,n):
            for e in h: e[1]+=n
            h[:]=[e for e in h if e[1]<24]
        def required(h,c):
            r=0
            for p,a in h:
                k=need(p,c)-a
                if k>r: r=k
            return r
        newpos={}
        for i,it in enumerate(items):
            if it[0]=='label':
                newpos[it[1]]=len(out)
                out.append(it)
                for sn in snaps.get(it[1],[]):
                    hist.extend([[p,a] for p,a in sn])
                continue
            c=it[1]
            r=required(hist,c)
            if r>0:
                while r>0:
                    k=min(r,16)
                    nop=Ins('s_nop %d'%(k-1)); out.append(('ins',nop)); age(hist,k); r-=k
            out.append(it)
            age(hist,c.nstates)
            if c.cls in('valu','trans','mfma','salu','vmem_st'): hist.append([c,0])
            if c.op=='s_branch' or c.op.startswith('s_cbranch'):
                tgt=c.ops[0]
                if tgt in labels and labels[tgt]>i:
                    snaps.setdefault(tgt,[]).append([[p,a] for p,a in hist])
                if c.op=='s_branch': hist=[]
            if c.op=='s_endpgm': hist=[]
        for i,it in enumerate(out):
            if it[0]=='ins' and (it[1].op=='s_branch' or it[1].op.startswith('s_cbranch')):
                tgt=it[1].ops[0]
                if tgt in newpos and newpos[tgt]<i:
                    h=[]
                    j=max(0,i-40)
                    for q in range(j,i+1):
                        if out[q][0]=='ins':
                            age(h,out[q][1].nstates)
                            if out[q][1].cls in('valu','trans','mfma','salu','vmem_st'): h.append([out[q][1],0])
                    st=0; q=newpos[tgt]
                    while st<24 and q<len(out):
                        if out[q][0]=='ins':
                            c=out[q][1]
                            r=required(h,c)
                            if r>0: raise RuntimeError('back-edge hazard at %s -> %s needs %d'%(it[1].text,c.text,r))
                            age(h,c.nstates); st+=c.nstates
                            if c.op=='s_branch': break
                        q+=1
        self.items=out
        if check_wait: self.check_waits()
        return self
    def check_waits(self):
        items=self.items
        pos={it[1]:i for i,it in enumerate(items) if it[0]=='label'}
        def run(lo,hi,vm,lg,sm):
            for q in range(lo,hi):
                it=items[q]
                if it[0]!='ins': continue
                c=it[1]
                if c.op=='s_waitcnt':
                    t=' '.join(c.ops)+' '+c.mods
                    m=re.search(r'vmcnt\((\d+)\)',t)
                    if m:
                        n=int(m.group(1))
                        while len(vm)>n: vm.pop(0)
                    m=re.search(r'lgkmcnt\((\d+)\)',t)
                    if m:
                        n=int(m.group(1))
                        if n==0: lg.clear(); sm.clear()
                        else:
                            while len(lg)>n: lg.pop(0)
                    continue
                touched=c.uses+c.defs
                for lst,nm in ((vm,'vmcnt'),(lg,'lgkmcnt'),(sm,'smem')):
                    for e in lst:
                        if e[1] and overlap(e[1],touched):
                            raise RuntimeError('missing %s wait: %s  (pending: %s)'%(nm,c.text,e[0].text))
                if c.cls in('vmem','vmem_st','vmem_lds'):
                    if c.op in('buffer_wbl2','buffer_inv'): vm.append((c,[]))
                    else: vm.append((c,list(c.defs)))
                    if len(vm)>63: raise RuntimeError('vmcnt overflow at '+c.text)
                elif c.cls=='ds':
                    lg.append((c,list(c.defs)))
                elif c.cls=='smem':
                    sm.append((c,list(c.defs)))
                if c.op=='s_endpgm' or c.op=='s_branch':
                    if c.op=='s_endpgm': vm.clear(); lg.clear(); sm.clear()
                if (c.op=='s_branch' or c.op.startswith('s_cbranch')) and c.ops[0] in pos and pos[c.ops[0]]<q and lo==0:
                    v2,l2,s2=list(vm),list(lg),list(sm)
                    run(pos[c.ops[0]],q,v2,l2,s2)
        run(0,len(items),[],[],[])
    def text(self):
        o=[]
        for it in self.items:
            o.append(it[1]+':' if it[0]=='label' else '    '+it[1].text)
        return '\n'.join(o)
    def nbytes_est(self):
        return sum(8 for it in self.items if it[0]=='ins')

def kernel_text(name, prog):
    return '.globl %s\n.p2align 8\n.type %s,@function\n%s:\n%s\n'%(name,name,name,prog.text())
def kernel_desc(name, nfv, accum, sgpr):
    return ('.p2align 6\n.amdhsa_kernel %s\n  .amdhsa_next_free_vgpr %d\n  .amdhsa_next_free_sgpr %d\n'
            '  .amdhsa_accum_offset %d\n  .amdhsa_group_segment_fixed_size 0\n  .amdhsa_kernarg_size 88\n'
            '  .amdhsa_user_sgpr_count 2\n  .amdhsa_user_sgpr_kernarg_segment_ptr 1\n'
            '  .amdhsa_system_sgpr_workgroup_id_x 1\n  .amdhsa_float_denorm_mode_32 3\n.end_amdhsa_kernel\n')%(name,nfv,sgpr,accum)
```

```python
import sys
import gen_m as M, gen_f as Fm
from gen_common import *
KNAME='gated_mix__spectral_gfnet__dense_activation_mish__prompt_kernel'
WS_STAMP=0x1800000
POLL_MAX=1<<15

class Stamps:
    def __init__(self,on): self.on=on; self.n=0
    def mark(self,p):
        if self.on:
            p(f's_memrealtime s[{70+2*self.n}:{71+2*self.n}]'); self.n+=1
    def dump(self,p,srd,lane):
        if not self.on: return
        p('s_waitcnt lgkmcnt(0)')
        for i in range(self.n): p(f'v_mov_b32 v{100+i}, s{70+2*i}')
        n4=(self.n+3)//4
        p(f'''
        v_mov_b32 v99, s2
        v_lshlrev_b32 v99, 6, v99
        v_cmp_eq_u32 vcc, 0, v0
        s_and_saveexec_b64 s[68:69], vcc
        s_mov_b32 s67, {WS_STAMP}
        ''')
        for q in range(n4): p(f'buffer_store_dwordx4 v[{100+4*q}:{103+4*q}], v99, s[{srd}:{srd+3}], s67 offen offset:{16*q}')
        p('s_mov_b64 exec, s[68:69]')

def post_flag(p, R, idx_sgpr, base):
    lab=p.label('pf')
    p(f'''
    s_cmp_lg_u32 s{R.sWV}, 0
    s_cbranch_scc1 {lab}
    s_lshl_b32 s{R.sT0}, s{idx_sgpr}, 2
    s_add_u32 s{R.sT0}, s{R.sT0}, {base}
    v_mov_b32 v14, s{R.sTAG}
    v_mov_b32 v15, 0
    s_mov_b64 s[{R.sMSK}:{R.sMSK+1}], exec
    s_mov_b64 exec, 1
    buffer_store_dword v14, v15, s[{R.SRD_WS}:{R.SRD_WS+3}], s{R.sT0} offen sc0 sc1
    s_mov_b64 exec, s[{R.sMSK}:{R.sMSK+1}]
    {lab}:
    ''')

def poll(p, R, base, n, base_sgpr=None, v=14):
    lab=p.label('pw'); lp=p.label('pl'); dn=p.label('pd')
    p(f'''
    s_cmp_lg_u32 s{R.sWV}, 0
    s_cbranch_scc1 {lab}
    s_mov_b32 s{R.sT1}, 0
    ''')
    if base_sgpr is None: p(f's_mov_b32 s{R.sT0}, {base}')
    else: p(f's_add_u32 s{R.sT0}, s{base_sgpr}, {base}')
    if n==256:
        p(f'''
        v_lshlrev_b32 v{v}, 4, v{R.vLANE}
        {lp}:
        buffer_load_dwordx4 v[{v+2}:{v+5}], v{v}, s[{R.SRD_WS}:{R.SRD_WS+3}], s{R.sT0} offen sc0 sc1
        s_add_u32 s{R.sT1}, s{R.sT1}, 1
        s_waitcnt vmcnt(0)
        v_xor_b32 v{v+2}, s{R.sTAG}, v{v+2}
        v_xor_b32 v{v+3}, s{R.sTAG}, v{v+3}
        v_xor_b32 v{v+4}, s{R.sTAG}, v{v+4}
        v_xor_b32 v{v+5}, s{R.sTAG}, v{v+5}
        v_or3_b32 v{v+2}, v{v+2}, v{v+3}, v{v+4}
        v_or_b32 v{v+2}, v{v+2}, v{v+5}
        v_cmp_ne_u32 vcc, 0, v{v+2}
        ''')
    else:
        p(f'''
        v_lshlrev_b32 v{v}, 2, v{R.vLANE}
        v_cmp_gt_u32 s[{R.sMSK}:{R.sMSK+1}], {n}, v{R.vLANE}
        {lp}:
        buffer_load_dword v{v+2}, v{v}, s[{R.SRD_WS}:{R.SRD_WS+3}], s{R.sT0} offen sc0 sc1
        s_add_u32 s{R.sT1}, s{R.sT1}, 1
        s_waitcnt vmcnt(0)
        v_cmp_ne_u32 vcc, s{R.sTAG}, v{v+2}
        s_and_b64 vcc, vcc, s[{R.sMSK}:{R.sMSK+1}]
        ''')
    p(f'''
    s_cbranch_vccz {dn}
    s_cmp_ge_u32 s{R.sT1}, {POLL_MAX}
    s_cbranch_scc1 {dn}
    s_sleep 6
    s_branch {lp}
    {dn}:
    {lab}:
    s_barrier
    ''')

def build(stamps=False):
    p=Prog('K')
    p(f'''
    s_cmp_ge_u32 s2, 512
    s_cbranch_scc1 K_end
    s_cmp_ge_u32 s2, 256
    s_cbranch_scc1 K_roleF
    ''')
    R=M; st=Stamps(stamps)
    st.mark(p)
    M.m_prologue(p)
    p(f's_load_dword s{R.sTAG}, s[66:67], {WS_EPOCH}')
    p(f's_cmp_ge_u32 s{R.sJ}, 28\ns_cbranch_scc1 K_idleG1')
    def tagwait(p): p(f's_waitcnt lgkmcnt(0)\ns_add_u32 s{R.sTAG}, s{R.sTAG}, 1')
    def fgidx(p): p(f's_lshl_b32 s{R.sT2}, s{R.sRB}, 4\ns_add_u32 s{R.sT2}, s{R.sT2}, s{R.sFB}')
    def after0(p,vm):
        st.mark(p)
        vm.wait([('S',0)])
        p('s_barrier')
        fgidx(p); post_flag(p,R,R.sT2,WS_FG0)
    vm=M.m_g1(p, before_lds=tagwait, after_act0=after0)
    st.mark(p)
    p('s_waitcnt vmcnt(0)\ns_barrier')
    fgidx(p); post_flag(p,R,R.sT2,WS_FG1)
    p('s_branch K_g2')
    p('K_idleG1:')
    tagwait(p)
    p(f'''
    s_sub_u32 s{R.sT2}, s{R.sJ}, 28
    s_lshl_b32 s{R.sT3}, s{R.sX}, 2
    s_add_u32 s{R.sT2}, s{R.sT2}, s{R.sT3}
    s_lshr_b32 s{R.sT3}, s{R.sT2}, 1
    s_lshl_b32 s{R.sT3}, s{R.sT3}, 4
    s_and_b32 s{R.sT2}, s{R.sT2}, 1
    s_add_u32 s{R.sT2}, s{R.sT2}, s{R.sT3}
    s_add_u32 s{R.sT2}, s{R.sT2}, 14
    ''')
    post_flag(p,R,R.sT2,WS_FG1)
    p('K_g2:')
    if stamps and st.n<3:
        pass
    M.m_g2_setup(p)
    p(f's_lshr_b32 s{R.sT5}, s{R.sRT}, 1\ns_lshl_b32 s{R.sT5}, s{R.sT5}, 6')
    poll(p,R,WS_FG0,14,R.sT5)
    st.mark(p)
    def poll_late(p):
        lab=p.label('u0'); lab2=p.label('u1')
        p(f's_cmp_eq_u32 s{R.sU}, 0\ns_cbranch_scc1 {lab}')
        p(f's_lshr_b32 s{R.sT5}, s{R.sRT}, 1\ns_lshl_b32 s{R.sT5}, s{R.sT5}, 6')
        poll(p,R,WS_FG1,14,R.sT5,v=10)
        p(f's_branch {lab2}\n{lab}:')
        poll(p,R,WS_FG1,256,v=10)
        p(f'{lab2}:')
    M.m_g2(p,'K',poll_late)
    st.mark(p)
    p(f's_lshl_b32 s{R.sT5}, s{R.sX}, 7')
    poll(p,R,WS_FI,32,R.sT5)
    st.mark(p)
    M.m_final_loads(p)
    M.m_final(p)
    lab=p.label('ep')
    p(f'''
    s_or_b32 s{R.sT0}, s{R.sU}, s{R.sWV}
    s_cmp_lg_u32 s{R.sT0}, 0
    s_cbranch_scc1 {lab}
    v_mov_b32 v14, s{R.sTAG}
    v_mov_b32 v15, 0
    s_mov_b64 exec, 1
    buffer_store_dword v14, v15, s[{R.SRD_WS}:{R.SRD_WS+3}], 0 offen sc0 sc1
    s_mov_b64 exec, -1
    {lab}:
    ''')
    st.mark(p)
    st.dump(p,R.SRD_WS,R.vLANE)
    p('s_endpgm')
    R=Fm; st=Stamps(stamps)
    p('K_roleF:')
    st.mark(p)
    Fm.f_prologue(p)
    p(f's_load_dword s{R.sTAG}, s[40:41], {WS_EPOCH}')
    Fm.f_issue_loads(p)
    Fm.f_const_G64(p)
    Fm.f_const_R(p)
    p(f's_waitcnt lgkmcnt(0)\ns_add_u32 s{R.sTAG}, s{R.sTAG}, 1')
    Fm.f_phase_R(p)
    p('s_waitcnt vmcnt(4) lgkmcnt(0)')
    Fm.f_phase_gate(p)
    Fm.f_phase_P(p)
    st.mark(p)
    p('s_waitcnt vmcnt(0)\ns_barrier')
    post_flag(p,R,R.sU,WS_FR)
    Fm.f_const_C(p)
    Fm.f_colof(p)
    Fm.f_C_addr(p)
    st.mark(p)
    poll(p,R,WS_FR,256)
    st.mark(p)
    Fm.f_C_all(p,'K')
    st.mark(p)
    p('s_waitcnt vmcnt(0)\ns_barrier')
    post_flag(p,R,R.sU,WS_FC)
    Fm.f_const_I(p)
    Fm.f_I_addr(p)
    poll(p,R,WS_FC,256)
    st.mark(p)
    Fm.f_I_loads(p,'K')
    Fm.f_phase_I(p)
    st.mark(p)
    p('s_waitcnt vmcnt(0)\ns_barrier')
    p(f's_lshl_b32 s{R.sT2}, s{R.sX}, 5\ns_add_u32 s{R.sT2}, s{R.sT2}, s{R.sJ}')
    post_flag(p,R,R.sT2,WS_FI)
    st.mark(p)
    st.dump(p,R.SRD_WS,R.vLANE)
    p('K_end:\ns_endpgm')
    p.finalize()
    return p

HEADER=open('gated_mix__spectral_gfnet__dense_activation_mish__prompt.s.ref').read().split('; Override launch')[0]
def write(fn, stamps=False):
    p=build(stamps)
    txt=HEADER+'; @launch grid=(512,1,1) block=(256,1,1) lds=81920\n.amdgcn_target "amdgcn-amd-amdhsa--gfx950"\n.text\n'+kernel_text(KNAME,p)+'.section .rodata,"a"\n'+kernel_desc(KNAME,256,256,96)
    open(fn,'w').write(txt)
    print(fn, len([i for i in p.items if i[0]=='ins']),'instructions')
if __name__=='__main__':
    write('fused.s',False)
    write('fused_st.s',True)
```

```python
from asmlib import *
S,D,F=2048,512,1792
WS_EPOCH=0
WS_FR=0x1000; WS_FC=0x2000; WS_FI=0x3000; WS_FG0=0x4000; WS_FG1=0x5000
WS_OMG=0x8000
WS_T=0x100000;  TS=8320
WS_WT=0x400000; WTS=8320
WS_Z=0x700000;  ZS=8320
WS_GA=0xA00000
WS_ACT=0xD00000; ACT_RT=28*8192
WS_SIZE=0x10000000
SRD3=0x20000
def srd(p, s, ptr, nbytes):
    p(f'''
    s_mov_b32 s{s}, s{ptr}
    s_and_b32 s{s+1}, s{ptr+1}, 0xffff
    s_mov_b32 s{s+2}, {nbytes}
    s_mov_b32 s{s+3}, {SRD3}
    ''')
def fbits(x):
    import struct
    return '0x%08x'%struct.unpack('<I',struct.pack('<f',x))[0]
```

```python
from gen_common import *

sU,sX,sJ,sWV=3,4,5,6
SRD_XA,SRD_WR,SRD_WI,SRD_GW,SRD_WS=8,12,16,20,24
sTAG=28
sT0,sT1,sT2,sT3,sT4,sT5,sT6,sT7=29,30,31,42,43,44,45,46
sKD=47
sMSK=48
sCG,sPB,sPROW=52,53,54
XL=0; XROW=1088
PL=8704; PROW=144
GL=17920
TL=18432
WL=26624
EL=34816; EROW=72; EPART=64*72
ZL=44032; ZZERO=ZL+257*32
VL=0
F_LDS=ZZERO+32
vLANE,vN,vG=1,2,3
G64C=[100,104]; G64S=[108,112]; G64M=[116,120]
G32=124
A2=164; A3=168; I1R=172; I1I=176
TWRC,TWRS=180,184
TWCC,TWCS=188,196
TWIC,TWIS=204,220
vGATE=236
def WS(): return f's[{SRD_WS}:{SRD_WS+3}]'

def f_prologue(p):
    p(f'''
    s_load_dwordx4 s[32:35], s[0:1], 0
    s_load_dwordx2 s[36:37], s[0:1], 16
    s_load_dwordx2 s[38:39], s[0:1], 56
    s_load_dwordx2 s[40:41], s[0:1], 80
    s_and_b32 s{sU}, s2, 255
    s_and_b32 s{sX}, s{sU}, 7
    s_lshr_b32 s{sJ}, s{sU}, 3
    v_lshrrev_b32 v4, 6, v0
    v_and_b32 v{vLANE}, 63, v0
    v_readfirstlane_b32 s{sWV}, v4
    v_and_b32 v{vN}, 15, v{vLANE}
    v_lshrrev_b32 v{vG}, 4, v{vLANE}
    s_waitcnt lgkmcnt(0)
    ''')
    srd(p,SRD_XA,32,S*D*2); srd(p,SRD_WR,34,S*257*2); srd(p,SRD_WI,36,S*257*2); srd(p,SRD_GW,38,D*2); srd(p,SRD_WS,40,WS_SIZE)

def cs(p, ang, vc, vs, n):
    for i in range(n):
        p(f'v_cos_f32 v{vc+i}, v{ang+i}')
        p(f'v_sin_f32 v{vs+i}, v{ang+i}')
def ramp(p, dst, step, n):
    for i in range(1,n): p(f'v_add_f32 v{dst+i}, v{dst+i-1}, v{step}')

def f_const_G64(p):
    p(f'''
    s_lshl_b32 s{sT0}, s{sWV}, 4
    v_add_u32 v4, s{sT0}, v{vN}
    v_cvt_f32_u32 v4, v4
    v_mul_f32 v4, {fbits(1/64)}, v4
    v_lshlrev_b32 v5, 3, v{vG}
    v_cvt_f32_u32 v5, v5
    v_mul_f32 v5, v5, v4
    ''')
    for u in range(2):
        if u==0: p('v_mov_b32 v8, v5')
        else: p(f'v_fma_f32 v8, v4, s{sT1}, v5')
        if u==0: p(f's_mov_b32 s{sT1}, {fbits(32.0)}')
        ramp(p,8,4,8)
        cs(p,8,16,24,8)
        for q in range(4):
            p(f'v_cvt_pk_bf16_f32 v{G64C[u]+q}, v{16+2*q}, v{17+2*q}')
            p(f'v_cvt_pk_bf16_f32 v{G64S[u]+q}, v{24+2*q}, v{25+2*q}')
            p(f'v_cvt_pk_bf16_f32 v{G64M[u]+q}, -v{24+2*q}, -v{25+2*q}')

def f_const_R(p):
    p(f'''
    v_and_b32 v6, 1, v{vG}
    v_lshlrev_b32 v6, 2, v6
    v_cvt_f32_u32 v6, v6
    v_mul_f32 v7, {fbits(1/8)}, v4
    v_mul_f32 v8, v6, v7
    ''')
    ramp(p,8,7,4)
    cs(p,8,TWRC,TWRS,4)
    p(f'''
    v_lshrrev_b32 v7, 2, v{vN}
    v_cvt_f32_u32 v7, v7
    v_mul_f32 v7, {fbits(1/8)}, v7
    v_mul_f32 v8, v6, v7
    ''')
    ramp(p,8,7,4)
    cs(p,8,16,20,4)
    p(f'''
    v_and_b32 v12, 1, v{vN}
    v_lshrrev_b32 v13, 1, v{vG}
    v_cmp_eq_u32 s[{sMSK}:{sMSK+1}], v12, v13
    v_and_b32 v12, 2, v{vN}
    v_cmp_ne_u32 vcc, 0, v12
    ''')
    for r in range(4):
        p(f'v_cndmask_b32_e64 v{24+r}, v{16+r}, -v{20+r}, vcc')
        p(f'v_cndmask_b32_e64 v{28+r}, v{20+r}, v{16+r}, vcc')
    for r in range(8):
        p(f'v_cndmask_b32_e64 v{24+r}, 0, v{24+r}, s[{sMSK}:{sMSK+1}]')
    for q in range(4):
        p(f'v_cvt_pk_bf16_f32 v{A2+q}, v{24+2*q}, v{25+2*q}')
    p(f'''
    v_cmp_gt_u32 s[{sMSK+2}:{sMSK+3}], 4, v{vN}
    v_mov_b32 v12, 0x3f003f00
    v_mov_b32 v13, 0xbf003f00
    s_and_b64 s[{sMSK}:{sMSK+1}], s[{sMSK}:{sMSK+1}], s[{sMSK+2}:{sMSK+3}]
    v_cndmask_b32 v12, v12, v13, vcc
    v_mov_b32 v{A3+2}, 0
    v_mov_b32 v{A3+3}, 0
    v_cndmask_b32_e64 v{A3}, 0, v12, s[{sMSK}:{sMSK+1}]
    v_mov_b32 v{A3+1}, v{A3}
    ''')

R_A=8; R_D=40; R_B2=72; R_AC2=80; R_AC3=124
P_WR=188; P_WI=196; P_X=204
G_W=206; G_X=214; G_T=222

def f_issue_loads(p):
    p(f'''
    v_lshlrev_b32 v96, 4, v{vLANE}
    s_lshl_b32 s{sT0}, s{sX}, 8
    s_add_u32 s{sT0}, s{sT0}, s{sJ}
    s_lshl_b32 s{sT1}, s{sWV}, 6
    s_add_u32 s{sT0}, s{sT0}, s{sT1}
    s_lshl_b32 s{sT0}, s{sT0}, 10
    s_mul_i32 s{sT1}, s{sWV}, {2*XROW}
    s_add_u32 m0, s{sT1}, {XL}
    s_add_u32 s{sT2}, s{sT0}, {32*1024}
    buffer_load_dwordx4 v96, s[{SRD_XA}:{SRD_XA+3}], s{sT0} offen lds
    s_add_u32 m0, m0, {XROW}
    v_and_b32 v97, 31, v0
    buffer_load_dwordx4 v96, s[{SRD_XA}:{SRD_XA+3}], s{sT2} offen lds
    v_lshlrev_b32 v97, 5, v97
    buffer_load_dwordx4 v[{G_W}:{G_W+3}], v97, s[{SRD_GW}:{SRD_GW+3}], 0 offen
    buffer_load_dwordx4 v[{G_W+4}:{G_W+7}], v97, s[{SRD_GW}:{SRD_GW+3}], 0 offen offset:16
    s_and_b32 s{sCG}, s{sJ}, 3
    s_lshr_b32 s{sPB}, s{sJ}, 2
    s_lshl_b32 s{sT5}, s{sX}, 3
    s_add_u32 s{sPB}, s{sPB}, s{sT5}
    s_lshl_b32 s{sPROW}, s{sPB}, 5
    s_lshl_b32 s{sT6}, s{sWV}, 3
    s_add_u32 s{sPROW}, s{sPROW}, s{sT6}
    s_mul_i32 s{sT6}, s{sPROW}, 514
    s_lshl_b32 s{sT7}, s{sCG}, 7
    s_add_u32 s{sT7}, s{sT6}, s{sT7}
    v_lshlrev_b32 v98, 1, v{vLANE}
    ''')
    for i in range(8):
        p(f'buffer_load_ushort v{P_WR+i}, v98, s[{SRD_WR}:{SRD_WR+3}], s{sT7} offen offset:{514*i}')
        p(f'buffer_load_ushort v{P_WI+i}, v98, s[{SRD_WI}:{SRD_WI+3}], s{sT7} offen offset:{514*i}')
    p(f'''
    v_mul_u32_u24 v99, 514, v{vLANE}
    s_add_u32 s{sT6}, s{sT6}, 512
    v_add_u32 v99, s{sT6}, v99
    s_cmp_eq_u32 s{sCG}, 3
    s_cselect_b32 s{sT7}, 8, 0
    v_cmp_gt_u32 vcc, s{sT7}, v{vLANE}
    v_mov_b32 v5, 0x7ff00000
    v_cndmask_b32 v99, v5, v99, vcc
    buffer_load_ushort v{P_X}, v99, s[{SRD_WR}:{SRD_WR+3}], 0 offen
    buffer_load_ushort v{P_X+1}, v99, s[{SRD_WI}:{SRD_WI+3}], 0 offen
    ''')

def cmul_pk(p, re, im, c, s, ore, oim, tmp, conj=False):
    if not conj:
        p(f'''
        v_pk_mul_f32 v[{tmp}:{tmp+1}], v[{re}:{re+1}], v[{c}:{c+1}]
        v_pk_mul_f32 v[{tmp+2}:{tmp+3}], v[{im}:{im+1}], v[{c}:{c+1}]
        v_pk_fma_f32 v[{ore}:{ore+1}], v[{im}:{im+1}], v[{s}:{s+1}], v[{tmp}:{tmp+1}]
        v_pk_fma_f32 v[{oim}:{oim+1}], v[{re}:{re+1}], v[{s}:{s+1}], v[{tmp+2}:{tmp+3}] neg_lo:[1,0,0] neg_hi:[1,0,0]
        ''')
    else:
        p(f'''
        v_pk_mul_f32 v[{tmp}:{tmp+1}], v[{re}:{re+1}], v[{c}:{c+1}]
        v_pk_mul_f32 v[{tmp+2}:{tmp+3}], v[{im}:{im+1}], v[{c}:{c+1}]
        v_pk_fma_f32 v[{ore}:{ore+1}], v[{im}:{im+1}], v[{s}:{s+1}], v[{tmp}:{tmp+1}] neg_lo:[1,0,0] neg_hi:[1,0,0]
        v_pk_fma_f32 v[{oim}:{oim+1}], v[{re}:{re+1}], v[{s}:{s+1}], v[{tmp+2}:{tmp+3}]
        ''')
def twiddle_pack(p, dre, dim, c, s, dst, tmp, conj=False):
    cmul_pk(p,dre,dim,c,s,tmp+4,tmp+8,tmp,conj)
    cmul_pk(p,dre+2,dim+2,c+2,s+2,tmp+6,tmp+10,tmp,conj)
    p(f'''
    v_cvt_pk_bf16_f32 v{dst}, v{tmp+4}, v{tmp+5}
    v_cvt_pk_bf16_f32 v{dst+1}, v{tmp+6}, v{tmp+7}
    v_cvt_pk_bf16_f32 v{dst+2}, v{tmp+8}, v{tmp+9}
    v_cvt_pk_bf16_f32 v{dst+3}, v{tmp+10}, v{tmp+11}
    ''')
def mf16(p,d,a,b,c=None):
    cc = f'v[{c}:{c+3}]' if c is not None else '0'
    p(f'v_mfma_f32_16x16x32_bf16 v[{d}:{d+3}], v[{a}:{a+3}], v[{b}:{b+3}], {cc}')

def f_phase_R(p):
    p(f'''
    v_bfe_u32 v4, v{vN}, 1, 1
    v_mul_u32_u24 v4, {XROW}, v4
    v_lshl_add_u32 v4, v{vG}, 7, v4
    v_lshrrev_b32 v5, 2, v{vN}
    v_lshl_add_u32 v4, v5, 4, v4
    v_and_b32 v5, 1, v{vN}
    v_lshl_add_u32 v4, v5, 3, v4
    v_lshrrev_b32 v5, 5, v0
    v_mul_u32_u24 v5, {XROW}, v5
    v_and_b32 v6, 31, v0
    v_lshl_add_u32 v5, v6, 5, v5
    s_waitcnt vmcnt(20)
    s_barrier
    ''')
    for pp in range(4):
        for u in range(2):
            for hh in range(2):
                b=R_A+(2*pp+u)*4+2*hh
                p(f'ds_read_b64_tr_b16 v[{b}:{b+1}], v4 offset:{XL+pp*2*XROW+u*512+hh*64}')
    p(f'''
    ds_read_b128 v[{G_X}:{G_X+3}], v5 offset:{XL}
    ds_read_b128 v[{G_X+4}:{G_X+7}], v5 offset:{XL+16}
    ''')
    DRE=lambda pp: R_D+8*pp
    DIM=lambda pp: R_D+8*pp+4
    for pp in range(4):
        p(f's_waitcnt lgkmcnt({2+4*(3-pp)})')
        mf16(p,DRE(pp),R_A+8*pp,G64C[0])
        mf16(p,DIM(pp),R_A+8*pp,G64M[0])
        mf16(p,DRE(pp),R_A+8*pp+4,G64C[1],DRE(pp))
        mf16(p,DIM(pp),R_A+8*pp+4,G64M[1],DIM(pp))
    p(f'''
    s_lshl_b32 s{sT0}, s{sWV}, 2
    v_lshrrev_b32 v6, 2, v{vN}
    v_add_u32 v6, s{sT0}, v6
    v_lshl_add_u32 v6, v{vG}, 4, v6
    v_lshlrev_b32 v6, 7, v6
    v_and_b32 v7, 3, v{vN}
    v_lshl_add_u32 v6, v7, 4, v6
    s_mul_i32 s{sT1}, s{sU}, {TS}
    s_add_u32 s{sT1}, s{sT1}, {WS_T}
    ''')
    for pp in range(4):
        b2=R_B2+4*(pp&1)
        twiddle_pack(p,DRE(pp),DIM(pp),TWRC,TWRS,b2,R_A)
        mf16(p,R_AC2+4*pp,A2,b2)
        mf16(p,R_AC3+4*pp,A3,b2)
    for pp in range(4):
        p(f'v_cvt_pk_bf16_f32 v{20+pp}, v{R_AC2+4*pp}, v{R_AC2+4*pp+1}')
        p(f'v_cvt_pk_bf16_f32 v{24+pp}, v{R_AC2+4*pp+2}, v{R_AC2+4*pp+3}')
    for pp in range(4):
        p(f'v_cvt_pk_bf16_f32 v{28+pp}, v{R_AC3+4*pp}, v{R_AC3+4*pp+1}')
        p(f'v_cvt_pk_bf16_f32 v{32+pp}, v{R_AC3+4*pp+2}, v{R_AC3+4*pp+3}')
    p(f'''
    s_cmp_eq_u32 s{sWV}, 0
    s_cselect_b32 s{sT0}, 1, 0
    v_cmp_gt_u32 vcc, s{sT0}, v{vLANE}
    v_mov_b32 v36, 0
    v_mov_b32 v37, 0
    v_mov_b32 v38, 0
    v_mov_b32 v39, 0
    ''')
    for pp in range(4): p(f'v_cndmask_b32 v{20+pp}, v{20+pp}, v{28+pp}, vcc')
    p(f'''
    v_mov_b32 v7, 0x7ff00000
    v_mov_b32 v5, {64*128}
    v_cndmask_b32 v7, v7, v5, vcc
    buffer_store_dwordx4 v[20:23], v6, {WS()}, s{sT1} offen sc1
    buffer_store_dwordx4 v[24:27], v6, {WS()}, s{sT1} offen offset:64 sc1
    ''')
    p(f'''
    buffer_store_dwordx4 v[32:35], v7, {WS()}, s{sT1} offen sc1
    buffer_store_dwordx4 v[36:39], v7, {WS()}, s{sT1} offen offset:64 sc1
    ''')

def f_phase_gate(p):
    p(f'''
    v_dot2_f32_bf16 v{G_T}, v{G_X}, v{G_W}, 0
    v_dot2_f32_bf16 v{G_T+1}, v{G_X+1}, v{G_W+1}, 0
    ''')
    for q in range(2,8,2):
        p(f'v_dot2_f32_bf16 v{G_T}, v{G_X+q}, v{G_W+q}, v{G_T}')
        p(f'v_dot2_f32_bf16 v{G_T+1}, v{G_X+q+1}, v{G_W+q+1}, v{G_T+1}')
    p(f'v_add_f32 v{G_T}, v{G_T}, v{G_T+1}')
    for sh in (1,2,4,8):
        p(f'v_add_f32_dpp v{G_T}, v{G_T}, v{G_T} row_shr:{sh} row_mask:0xf bank_mask:0xf bound_ctrl:1')
    p(f'v_add_f32_dpp v{G_T}, v{G_T}, v{G_T} row_bcast:15 row_mask:0xa bank_mask:0xf')
    t=G_T
    p(f'''
    v_cvt_pk_bf16_f32 v{t+1}, v{t}, v{t}
    v_lshlrev_b32 v{t+1}, 16, v{t+1}
    v_mul_f32 v{t+1}, {fbits(-1.4426950408889634)}, v{t+1}
    v_exp_f32 v{t+1}, v{t+1}
    v_add_f32 v{t+1}, 1.0, v{t+1}
    v_rcp_f32 v{t+1}, v{t+1}
    v_cvt_pk_bf16_f32 v{t+1}, v{t+1}, v{t+1}
    v_lshlrev_b32 v{t+2}, 16, v{t+1}
    v_sub_f32 v{t+3}, 1.0, v{t+2}
    v_cvt_pk_bf16_f32 v{t+3}, v{t+3}, v{t+3}
    v_lshlrev_b32 v{t+3}, 16, v{t+3}
    v_lshrrev_b32 v{t+4}, 5, v0
    v_lshlrev_b32 v{t+5}, 2, v{t+4}
    v_and_b32 v{t+6}, 31, v0
    v_cmp_eq_u32 vcc, 31, v{t+6}
    v_lshlrev_b32 v{t+4}, 7, v{t+4}
    s_lshl_b32 s{sT0}, s{sX}, 8
    s_add_u32 s{sT0}, s{sT0}, s{sJ}
    s_lshl_b32 s{sT0}, s{sT0}, 2
    s_add_u32 s{sT0}, s{sT0}, {WS_OMG}
    s_and_saveexec_b64 s[{sMSK}:{sMSK+1}], vcc
    ds_write_b32 v{t+5}, v{t+2} offset:{GL}
    buffer_store_dword v{t+3}, v{t+4}, {WS()}, s{sT0} offen sc1
    s_mov_b64 exec, s[{sMSK}:{sMSK+1}]
    ''')

def f_phase_P(p):
    for i in range(8):
        p(f'v_lshl_or_b32 v{P_WR+i}, v{P_WI+i}, 16, v{P_WR+i}')
    p(f'''
    v_mul_u32_u24 v4, {PROW}, v{vLANE}
    s_lshl_b32 s{sT0}, s{sWV}, 5
    v_add_u32 v4, s{sT0}, v4
    ds_write_b128 v4, v[{P_WR}:{P_WR+3}] offset:{PL}
    ds_write_b128 v4, v[{P_WR+4}:{P_WR+7}] offset:{PL+16}
    v_lshl_or_b32 v{P_X}, v{P_X+1}, 16, v{P_X}
    v_lshlrev_b32 v5, 2, v{vLANE}
    s_lshl_b32 s{sT0}, s{sPROW}, 2
    s_add_u32 s{sT0}, s{sT0}, {WS_WT+256*WTS}
    s_cmp_eq_u32 s{sCG}, 3
    s_cselect_b32 s{sT1}, 8, 0
    v_cmp_gt_u32 vcc, s{sT1}, v{vLANE}
    v_mov_b32 v6, 0x7ff00000
    v_cndmask_b32 v5, v6, v5, vcc
    buffer_store_dword v{P_X}, v5, {WS()}, s{sT0} offen sc1
    v_lshrrev_b32 v5, 3, v0                 ; t>>3 : column 0..31
    v_and_b32 v6, 7, v0
    v_mul_u32_u24 v7, {PROW}, v5
    v_lshl_add_u32 v7, v6, 4, v7
    v_mul_u32_u24 v5, {WTS}, v5
    v_lshl_add_u32 v5, v6, 4, v5
    s_lshl_b32 s{sT0}, s{sCG}, 6
    s_mul_i32 s{sT0}, s{sT0}, {WTS}
    s_lshl_b32 s{sT1}, s{sPB}, 7
    s_add_u32 s{sT0}, s{sT0}, s{sT1}
    s_add_u32 s{sT0}, s{sT0}, {WS_WT}
    s_add_u32 s{sT1}, s{sT0}, {32*WTS}
    s_waitcnt lgkmcnt(0)
    s_barrier
    ds_read_b128 v[8:11], v7 offset:{PL}
    ds_read_b128 v[12:15], v7 offset:{PL+32*PROW}
    s_waitcnt lgkmcnt(1)
    buffer_store_dwordx4 v[8:11], v5, {WS()}, s{sT0} offen sc1
    s_waitcnt lgkmcnt(0)
    buffer_store_dwordx4 v[12:15], v5, {WS()}, s{sT1} offen sc1
    ''')

def f_phase1(p):
    f_issue_loads(p)
    f_const_G64(p)
    f_const_R(p)
    f_phase_R(p)
    p('s_waitcnt vmcnt(4) lgkmcnt(0)')
    f_phase_gate(p)
    f_phase_P(p)

def f_const_C(p):
    p(f'''
    v_cvt_f32_u32 v4, v{vN}
    v_lshlrev_b32 v5, 2, v{vG}
    v_cvt_f32_u32 v5, v5                       ; 4g
    ''')
    for mt in range(2):
        p(f'''
        v_add_f32 v6, {fbits(16.0*mt)}, v4
        v_mul_f32 v6, {fbits(1/32)}, v6         ; row/32
        ''')
        for t in range(2):
            b=G32+10*(2*mt+t)
            p(f'''
            v_add_f32 v7, {fbits(16.0*t)}, v5
            v_mul_f32 v8, v7, v6
            ''')
            ramp(p,8,6,4)
            cs(p,8,16,20,4)
            p(f'''
            v_cvt_pk_bf16_f32 v{b+2}, v16, v17
            v_cvt_pk_bf16_f32 v{b+3}, v18, v19
            v_cvt_pk_bf16_f32 v{b+4}, v20, v21
            v_cvt_pk_bf16_f32 v{b+5}, v22, v23
            v_cvt_pk_bf16_f32 v{b}, -v20, -v21
            v_cvt_pk_bf16_f32 v{b+1}, -v22, -v23
            v_mov_b32 v{b+6}, v{b+2}
            v_mov_b32 v{b+7}, v{b+3}
            v_mov_b32 v{b+8}, v{b}
            v_mov_b32 v{b+9}, v{b+1}
            ''')
    p(f'''
    s_lshl_b32 s{sT0}, s{sWV}, 4
    v_add_u32 v6, s{sT0}, v{vN}
    v_cvt_f32_u32 v6, v6
    v_mul_f32 v6, {fbits(1/2048)}, v6
    ''')
    for t in range(2):
        p(f'''
        v_add_f32 v7, {fbits(16.0*t)}, v5
        v_mul_f32 v8, v7, v6
        ''')
        ramp(p,8,6,4)
        cs(p,8,TWCC+4*t,TWCS+4*t,4)

def G32f(mt,t,kind):
    b=G32+10*(2*mt+t)
    return b+{'MC':0,'CS':2,'SC':4,'CM':6}[kind]

def f_colof(p):
    p(f'''
    s_add_u32 s{sT0}, s{sJ}, 4
    s_and_b32 s{sT0}, s{sT0}, 31
    s_lshl_b32 s{sKD}, s{sX}, 5
    s_add_u32 s{sKD}, s{sKD}, s{sT0}
    ''')

def f_C_addr(p):
    p(f'''
    v_lshl_add_u32 v4, v{vN}, 3, v{vG}
    v_mul_u32_u24 v240, {TS}, v4
    v_lshlrev_b32 v241, 4, v{vLANE}
    s_lshl_b32 s{sT0}, s{sWV}, 6
    v_lshlrev_b32 v4, 2, v{vN}
    v_lshl_add_u32 v4, v{vG}, 10, v4
    v_add_u32 v4, s{sT0}, v4
    v_add_u32 v242, {WL}, v4
    s_lshl_b32 s{sT0}, s{sWV}, 4
    v_add_u32 v4, s{sT0}, v{vN}
    v_mul_u32_u24 v4, {EROW}, v4
    v_lshl_add_u32 v243, v{vG}, 3, v4
    v_lshrrev_b32 v4, 2, v{vN}
    v_lshl_add_u32 v5, v{vG}, 3, v4
    v_mul_u32_u24 v5, {EROW}, v5
    v_and_b32 v6, 3, v{vN}
    v_lshl_add_u32 v244, v6, 3, v5
    v_lshrrev_b32 v5, 1, v{vG}
    v_lshlrev_b32 v5, 10, v5
    v_lshl_add_u32 v5, v4, 7, v5
    v_and_b32 v4, 1, v{vG}
    v_lshl_add_u32 v5, v4, 6, v5
    v_lshl_add_u32 v245, v6, 4, v5
    ''')

def f_C_loads(p):
    p(f'''
    s_lshr_b32 s{sT0}, s{sWV}, 1              ; t
    s_lshl_b32 s{sT0}, s{sT0}, 7
    s_and_b32 s{sT1}, s{sWV}, 1               ; u
    s_lshl_b32 s{sT1}, s{sT1}, 2
    s_add_u32 s{sT0}, s{sT0}, s{sT1}
    s_mul_i32 s{sT0}, s{sT0}, {TS}
    s_lshr_b32 s{sT1}, s{sKD}, 2
    s_lshl_b32 s{sT1}, s{sT1}, 7
    s_add_u32 s{sT0}, s{sT0}, s{sT1}
    s_and_b32 s{sT1}, s{sKD}, 3
    s_lshl_b32 s{sT1}, s{sT1}, 4
    s_add_u32 s{sT0}, s{sT0}, s{sT1}
    s_add_u32 s{sT0}, s{sT0}, {WS_T}
    s_add_u32 s{sT1}, s{sT0}, 64
    s_lshl_b32 s{sT2}, s{sWV}, 11
    s_add_u32 m0, s{sT2}, {TL}
    s_mul_i32 s{sT3}, s{sKD}, {WTS}
    buffer_load_dwordx4 v240, {WS()}, s{sT0} offen sc1 lds
    s_add_u32 m0, m0, 1024
    s_add_u32 s{sT3}, s{sT3}, s{sT2}
    buffer_load_dwordx4 v240, {WS()}, s{sT1} offen sc1 lds
    s_add_u32 m0, s{sT2}, {WL}
    s_add_u32 s{sT3}, s{sT3}, {WS_WT}
    buffer_load_dwordx4 v241, {WS()}, s{sT3} offen sc1 lds
    s_add_u32 m0, m0, 1024
    s_add_u32 s{sT3}, s{sT3}, 1024
    buffer_load_dwordx4 v241, {WS()}, s{sT3} offen sc1 lds
    ''')

def f_phase_C(p):
    A=8; D1=40; TMP=56; B2=68; D2=76; WR=92
    fr=lambda t,u,part: A+4*((2*t+u)*2+part)
    p('s_waitcnt vmcnt(0)\ns_barrier')
    for t in range(2):
        for u in range(2):
            for part in range(2):
                f=fr(t,u,part)
                p(f'ds_read_b128 v[{f}:{f+3}], v241 offset:{TL+1024*((2*t+u)*2+part)}')
    for mt in range(2):
        for r in (0,2):
            p(f'ds_read2st64_b32 v[{WR+4*mt+r}:{WR+4*mt+r+1}], v242 offset0:{16*mt+r} offset1:{16*mt+r+1}')
    re=lambda t: D1+8*t
    im=lambda t: D1+8*t+4
    for t in range(2):
        p(f's_waitcnt lgkmcnt({4+4*(1-t)})')
        mf16(p,re(t),fr(t,0,0),G64C[0])
        mf16(p,im(t),fr(t,0,1),G64C[0])
        mf16(p,re(t),fr(t,1,0),G64C[1],re(t))
        mf16(p,im(t),fr(t,1,1),G64C[1],im(t))
        mf16(p,re(t),fr(t,0,1),G64S[0],re(t))
        mf16(p,im(t),fr(t,0,0),G64M[0],im(t))
        mf16(p,re(t),fr(t,1,1),G64S[1],re(t))
        mf16(p,im(t),fr(t,1,0),G64M[1],im(t))
    for t in range(2):
        twiddle_pack(p,re(t),im(t),TWCC+4*t,TWCS+4*t,B2+4*t,TMP)
    r2=lambda mt: D2+8*mt
    i2=lambda mt: D2+8*mt+4
    for mt in range(2):
        mf16(p,r2(mt),G32f(mt,0,'CS'),B2)
        mf16(p,i2(mt),G32f(mt,0,'MC'),B2)
        mf16(p,r2(mt),G32f(mt,1,'CS'),B2+4,r2(mt))
        mf16(p,i2(mt),G32f(mt,1,'MC'),B2+4,i2(mt))
    p('s_waitcnt lgkmcnt(0)')
    for q in range(8):
        p(f'v_lshlrev_b32 v{8+q}, 16, v{WR+q}')
        p(f'v_and_b32 v{16+q}, 0xffff0000, v{WR+q}')
    for mt in range(2):
        twiddle_pack(p,r2(mt),i2(mt),8+4*mt,16+4*mt,B2+4*mt,TMP,conj=True)
    for mt in range(2):
        mf16(p,re(mt),G32f(mt,0,'CM'),B2)
        mf16(p,im(mt),G32f(mt,0,'SC'),B2)
        mf16(p,re(mt),G32f(mt,1,'CM'),B2+4,re(mt))
        mf16(p,im(mt),G32f(mt,1,'SC'),B2+4,im(mt))
    for mt in range(2):
        d=68+4*mt
        twiddle_pack(p,re(mt),im(mt),TWCC+4*mt,TWCS+4*mt,d,TMP,conj=True)
        p(f'ds_write_b64 v243, v[{d}:{d+1}] offset:{EL+mt*32}')
        p(f'ds_write_b64 v243, v[{d+2}:{d+3}] offset:{EL+EPART+mt*32}')
    p('s_waitcnt lgkmcnt(0)\ns_barrier')
    eb=lambda nt,u,part: A+4*((2*nt+u)*2+part)
    for nt in range(2):
        for u in range(2):
            for part in range(2):
                for hh in range(2):
                    b=eb(nt,u,part)+2*hh
                    p(f'ds_read_b64_tr_b16 v[{b}:{b+1}], v244 offset:{EL+part*EPART+(32*u+4*hh)*EROW+nt*32}')
    p(f'''
    s_mul_i32 s{sT0}, s{sKD}, {ZS}
    s_lshl_b32 s{sT1}, s{sWV}, 11
    s_add_u32 s{sT0}, s{sT0}, s{sT1}
    s_add_u32 s{sT0}, s{sT0}, {WS_Z}
    ''')
    for nt in range(2):
        p(f's_waitcnt lgkmcnt({8*(1-nt)})')
        mf16(p,r2(nt),G64C[0],eb(nt,0,0))
        mf16(p,i2(nt),G64S[0],eb(nt,0,0))
        mf16(p,r2(nt),G64C[1],eb(nt,1,0),r2(nt))
        mf16(p,i2(nt),G64S[1],eb(nt,1,0),i2(nt))
        mf16(p,r2(nt),G64M[0],eb(nt,0,1),r2(nt))
        mf16(p,i2(nt),G64C[0],eb(nt,0,1),i2(nt))
        mf16(p,r2(nt),G64M[1],eb(nt,1,1),r2(nt))
        mf16(p,i2(nt),G64C[1],eb(nt,1,1),i2(nt))
    for nt in range(2):
        d=TMP+4*nt
        p(f'''
        v_cvt_pk_bf16_f32 v{d}, v{r2(nt)}, v{r2(nt)+1}
        v_cvt_pk_bf16_f32 v{d+1}, v{r2(nt)+2}, v{r2(nt)+3}
        v_cvt_pk_bf16_f32 v{d+2}, v{i2(nt)}, v{i2(nt)+1}
        v_cvt_pk_bf16_f32 v{d+3}, v{i2(nt)+2}, v{i2(nt)+3}
        buffer_store_dwordx4 v[{d}:{d+3}], v245, {WS()}, s{sT0} offen offset:{nt*512} sc1
        ''')

def f_C_all(p, name):
    p(f'{name}_colloop:')
    f_C_loads(p)
    f_phase_C(p)
    p(f'''
    s_cmp_eq_u32 s{sKD}, 0
    s_cbranch_scc0 {name}_coldone
    s_movk_i32 s{sKD}, 256
    s_branch {name}_colloop
    {name}_coldone:
    ''')

def f_const_I(p):
    p(f'''
    v_and_b32 v4, 7, v{vN}
    v_cvt_f32_u32 v4, v4                       ; c
    v_mul_f32 v5, {fbits(1/8)}, v4             ; c/8
    v_lshlrev_b32 v6, 1, v{vG}
    v_cvt_f32_u32 v6, v6                       ; 2g
    v_mul_f32 v8, v6, v5
    v_add_f32 v9, v8, v5
    v_lshrrev_b32 v7, 3, v{vN}
    v_lshlrev_b32 v7, 4, v7
    ''')
    cs(p,8,16,20,2)
    for (dst,vals) in ((I1R,('v16','-v20','v17','-v21')),(I1I,('v20','v16','v21','v17'))):
        for q,vv in enumerate(vals):
            p(f'v_cvt_pk_bf16_f32 v{dst+q}, {vv}, 0')
            p(f'v_lshlrev_b32 v{dst+q}, v7, v{dst+q}')
    p(f'''
    v_mul_f32 v5, {fbits(1/512)}, v4
    v_lshlrev_b32 v6, 2, v{vG}
    v_cvt_f32_u32 v6, v6                       ; 4g
    s_mov_b32 s{sT0}, {fbits(2.0**-19)}
    ''')
    for t in range(4):
        p(f'''
        v_add_f32 v7, {fbits(16.0*t)}, v6
        v_mul_f32 v8, v7, v5
        ''')
        ramp(p,8,5,4)
        cs(p,8,16,20,4)
        for r in range(4):
            p(f'v_mul_f32 v{TWIC+4*t+r}, s{sT0}, v{16+r}')
            p(f'v_mul_f32 v{TWIS+4*t+r}, s{sT0}, v{20+r}')

def f_I_addr(p):
    p(f'''
    s_lshr_b32 s{sT0}, s{sWV}, 1
    s_lshl_b32 s{sT0}, s{sT0}, 4
    s_and_b32 s{sT1}, s{sWV}, 1
    s_lshl_b32 s{sT1}, s{sT1}, 2
    s_add_u32 s{sT0}, s{sT0}, s{sT1}
    s_add_u32 s{sT0}, s{sT0}, {ZL}
    v_lshl_add_u32 v4, v{vG}, 7, v{vN}        ; 128g + m
    v_lshlrev_b32 v4, 5, v4
    v_add_u32 v4, s{sT0}, v4
    v_mov_b32 v5, {ZZERO}
    v_cmp_gt_u32 s[{sMSK}:{sMSK+1}], 2, v{vG}      ; g<2
    v_cmp_eq_u32 vcc, 32, v{vLANE}                 ; g==2, m==0
    s_or_b64 vcc, vcc, s[{sMSK}:{sMSK+1}]
    v_cndmask_b32 v240, v5, v4, vcc
    ''')
    for t in range(1,4):
        p(f'''
        v_add_u32 v6, {512*t}, v4
        v_cndmask_b32_e64 v{240+t}, v5, v6, s[{sMSK}:{sMSK+1}]
        ''')
    for t in range(4):
        p(f'''
        v_add_u32 v6, {2048+512*t}, v4
        v_cndmask_b32_e64 v{244+t}, v5, v6, s[{sMSK}:{sMSK+1}]
        ''')
    p(f'''
    v_lshrrev_b32 v4, 1, v{vG}
    v_lshl_add_u32 v4, v4, 4, v{vN}
    v_lshlrev_b32 v4, 4, v4
    v_and_b32 v5, 1, v{vG}
    v_lshl_add_u32 v4, v5, 3, v4
    s_lshl_b32 s{sT0}, s{sWV}, 12
    v_add_u32 v248, s{sT0}, v4
    v_lshlrev_b32 v249, 4, v{vLANE}
    v_lshrrev_b32 v4, 1, v{vLANE}
    v_mul_u32_u24 v4, {ZS}, v4
    v_and_b32 v5, 1, v{vLANE}
    v_lshl_add_u32 v250, v5, 6, v4
    v_and_b32 v4, 1, v{vG}
    v_lshlrev_b32 v4, 1, v4
    v_lshrrev_b32 v5, 1, v{vG}
    v_add_u32 v4, v4, v5
    v_lshlrev_b32 v4, 15, v4
    v_lshl_add_u32 v4, v{vN}, 4, v4
    s_lshl_b32 s{sT0}, s{sWV}, 8
    v_add_u32 v251, s{sT0}, v4
    v_mov_b32 v8, 0
    v_mov_b32 v9, 0
    v_mov_b32 v10, 0
    v_mov_b32 v11, 0
    v_lshlrev_b32 v4, 4, v{vLANE}
    v_cmp_gt_u32 vcc, 2, v{vLANE}
    v_lshrrev_b32 v5, 1, v{vG}
    v_lshlrev_b32 v5, 2, v5
    s_and_saveexec_b64 s[{sMSK}:{sMSK+1}], vcc
    ds_write_b128 v4, v[8:11] offset:{ZZERO}
    s_mov_b64 exec, s[{sMSK}:{sMSK+1}]
    ''')
    for pp in range(4):
        p(f'ds_read_b32 v{vGATE+pp}, v5 offset:{GL+8*pp}')

def f_I_loads(p, name):
    p(f'''
    s_lshl_b32 s{sT0}, s{sX}, 10
    s_lshr_b32 s{sT1}, s{sJ}, 2
    s_lshl_b32 s{sT1}, s{sT1}, 7
    s_add_u32 s{sT0}, s{sT0}, s{sT1}
    s_and_b32 s{sT1}, s{sJ}, 3
    s_lshl_b32 s{sT1}, s{sT1}, 4
    s_add_u32 s{sT0}, s{sT0}, s{sT1}
    s_add_u32 s{sT0}, s{sT0}, {WS_Z}
    s_mul_i32 s{sT1}, s{sWV}, {64*ZS}
    s_add_u32 s{sT1}, s{sT1}, s{sT0}
    s_lshl_b32 s{sT2}, s{sWV}, 11
    s_add_u32 m0, s{sT2}, {ZL}
    s_add_u32 s{sT2}, s{sT1}, {32*ZS}
    buffer_load_dwordx4 v250, {WS()}, s{sT1} offen sc1 lds
    s_add_u32 m0, m0, 1024
    s_cmp_lg_u32 s{sWV}, 0
    buffer_load_dwordx4 v250, {WS()}, s{sT2} offen sc1 lds
    s_cbranch_scc1 {name}_noextra
    s_add_u32 s{sT0}, s{sT0}, {256*ZS}
    s_mov_b32 m0, {ZL+8192}
    s_mov_b64 s[{sMSK}:{sMSK+1}], exec
    s_mov_b64 exec, 3
    buffer_load_dwordx4 v250, {WS()}, s{sT0} offen sc1 lds
    s_mov_b64 exec, s[{sMSK}:{sMSK+1}]
    {name}_noextra:
    ''')

def f_phase_I(p):
    A=8; Dd=24; TMP=56; PK=68
    p('s_waitcnt vmcnt(0) lgkmcnt(0)\ns_barrier')
    for t in range(4):
        p(f'ds_read2_b32 v[{A+4*t}:{A+4*t+1}], v{240+t} offset0:0 offset1:2')
        p(f'ds_read2_b32 v[{A+4*t+2}:{A+4*t+3}], v{244+t} offset0:0 offset1:2')
    re=lambda t: Dd+8*t
    im=lambda t: Dd+8*t+4
    for t in range(4):
        p(f's_waitcnt lgkmcnt({2*(3-t)})')
        mf16(p,re(t),A+4*t,I1R)
        mf16(p,im(t),A+4*t,I1I)
    for t in range(4):
        d=PK+4*t
        twiddle_pack(p,re(t),im(t),TWIC+4*t,TWIS+4*t,d,TMP,conj=True)
        off=VL+(t>>1)*1024+(t&1)*512
        p(f'ds_write_b64 v248, v[{d}:{d+1}] offset:{off}')
        p(f'ds_write_b64 v248, v[{d+2}:{d+3}] offset:{off+2048}')
    p('s_waitcnt lgkmcnt(0)\ns_barrier')
    fa=lambda pp,part,u: 8+16*pp+8*part+4*u
    for pp in range(4):
        for part in range(2):
            for u in range(2):
                f=fa(pp,part,u)
                p(f'ds_read_b128 v[{f}:{f+3}], v249 offset:{VL+pp*4096+part*2048+u*1024}')
    Y=76
    p(f'''
    s_lshl_b32 s{sT0}, s{sX}, 8
    s_add_u32 s{sT0}, s{sT0}, s{sJ}
    s_lshl_b32 s{sT0}, s{sT0}, 10
    s_add_u32 s{sT0}, s{sT0}, {WS_GA}
    s_add_u32 s{sT1}, s{sT0}, {4*32768}
    ''')
    for pp in range(4):
        p(f's_waitcnt lgkmcnt({4*(3-pp)})')
        y=Y+4*pp
        mf16(p,y,fa(pp,0,0),G64C[0])
        mf16(p,y,fa(pp,0,1),G64C[1],y)
        mf16(p,y,fa(pp,1,0),G64M[0],y)
        mf16(p,y,fa(pp,1,1),G64M[1],y)
    O=92
    for grp in range(2):
        for k in range(2):
            pp=2*grp+k; y=Y+4*pp
            p(f'''
            v_pk_mul_f32 v[{y}:{y+1}], v[{y}:{y+1}], v[{vGATE+pp-(pp&1)}:{vGATE+pp-(pp&1)+1}] op_sel:[0,{pp&1}] op_sel_hi:[1,{pp&1}]
            v_pk_mul_f32 v[{y+2}:{y+3}], v[{y+2}:{y+3}], v[{vGATE+pp-(pp&1)}:{vGATE+pp-(pp&1)+1}] op_sel:[0,{pp&1}] op_sel_hi:[1,{pp&1}]
            v_cvt_pk_bf16_f32 v{O+4*grp+2*k}, v{y}, v{y+1}
            v_cvt_pk_bf16_f32 v{O+4*grp+2*k+1}, v{y+2}, v{y+3}
            ''')
        o=O+4*grp
        p(f'''
        v_permlane16_swap_b32 v{o}, v{o+2}
        v_permlane16_swap_b32 v{o+1}, v{o+3}
        buffer_store_dwordx4 v[{o}:{o+3}], v251, {WS()}, s{sT0 if grp==0 else sT1} offen sc1
        ''')
```

```python
from gen_common import *

sU,sX,sJ,sWV=3,4,5,6
SRD_XB,SRD_W1,SRD_B1,SRD_W2,SRD_WS,SRD_OUT=8,12,16,20,24,28
sTAG=32
sRB,sFB,sKC0=33,34,35
sXO,sWO=36,37
sT0,sT1,sT2,sT3,sT4,sT5=38,39,40,41,42,43
sLOG2E=44
sMSK=46
sRT,sCT,sFBI,sLATE,sIT=48,49,50,51,52
sACTB,sW2B=53,54
def WS(): return f's[{SRD_WS}:{SRD_WS+3}]'

XR=0; WR=32768
vLANE=1
vX0,vX1,vW=2,3,4
vB=[5,6,7,8]; vA=[9,10]
vSW,vSR,vST=11,12,13
AF=48
ACC=[64,96]
XF=128

STAGE_HOOK=None
ITER_HOOK=None
class VM:
    def __init__(self,p): self.p=p; self.q=[]
    def issue(self,tag,n=1): self.q+= [tag]*n
    def wait(self,tags,extra=''):
        last=-1
        for i,t in enumerate(self.q):
            if t in tags: last=i
        n=len(self.q)-1-last
        assert n<=63
        self.p(f's_waitcnt vmcnt({n}) {extra}')
        self.q=self.q[last+1:]
    def waitall(self,extra=''):
        self.p(f's_waitcnt vmcnt(0) {extra}'); self.q=[]

def m_prologue(p):
    p(f'''
    s_load_dwordx2 s[56:57], s[0:1], 0
    s_load_dwordx2 s[58:59], s[0:1], 32
    s_load_dwordx4 s[60:63], s[0:1], 40
    s_load_dwordx2 s[64:65], s[0:1], 64
    s_load_dwordx2 s[66:67], s[0:1], 80
    s_and_b32 s{sU}, s2, 255
    s_and_b32 s{sX}, s{sU}, 7
    s_lshr_b32 s{sJ}, s{sU}, 3
    v_lshrrev_b32 v14, 6, v0
    v_and_b32 v{vLANE}, 63, v0
    v_readfirstlane_b32 s{sWV}, v14
    s_mov_b32 s{sLOG2E}, {fbits(1.4426950408889634)}
    s_mov_b32 s{sLOG2E+1}, {fbits(1.4426950408889634)}
    s_waitcnt lgkmcnt(0)
    ''')
    srd(p,SRD_XB,56,S*D*2); srd(p,SRD_W1,58,D*F*2); srd(p,SRD_B1,60,F*2); srd(p,SRD_W2,62,F*D*2); srd(p,SRD_OUT,64,S*D*2); srd(p,SRD_WS,66,WS_SIZE)

def swz_addr(p, dst, rowstride, zexpr):
    p(zexpr)
    p(f'''
    v_and_b32 v16, 7, v{vLANE}
    v_xor_b32 v16, v16, v15
    v_lshlrev_b32 v16, 4, v16
    v_lshrrev_b32 v17, 3, v{vLANE}
    v_mul_u32_u24 v17, {rowstride}, v17
    v_add_u32 v{dst}, v16, v17
    ''')
def b_addr(p, regs, base_sgpr):
    p(f'''
    v_and_b32 v14, 31, v{vLANE}
    v_lshrrev_b32 v15, 5, v{vLANE}
    v_bfe_u32 v16, v14, 1, 3
    v_lshlrev_b32 v14, 7, v14
    v_add_u32 v14, s{base_sgpr}, v14
    ''')
    for q in range(4):
        p(f'''
        v_add_u32 v17, {2*q}, v15
        v_xor_b32 v17, v17, v16
        v_lshl_add_u32 v{regs[q]}, v17, 4, v14
        ''')
def a_addr(p, dst, mi_vgpr_or_const, base):
    p(f'''
    v_lshrrev_b32 v14, 5, v{vLANE}
    v_lshlrev_b32 v14, 3, v14
    v_bfe_u32 v15, v{vLANE}, 2, 2
    v_add_u32 v14, v14, v15
    v_lshlrev_b32 v14, 7, v14
    v_bfe_u32 v15, v{vLANE}, 3, 1
    v_xor_b32 v15, {mi_vgpr_or_const}, v15
    v_lshl_add_u32 v14, v15, 6, v14
    v_bfe_u32 v15, v{vLANE}, 4, 1
    v_lshl_add_u32 v14, v15, 5, v14
    v_and_b32 v15, 3, v{vLANE}
    v_lshl_add_u32 v14, v15, 3, v14
    v_add_u32 v{dst}, {base}, v14
    ''')

def m_g1_setup(p):
    p(f'''
    s_lshr_b32 s{sT0}, s{sX}, 1
    s_lshl_b32 s{sT0}, s{sT0}, 2
    s_and_b32 s{sT1}, s{sJ}, 3
    s_add_u32 s{sRB}, s{sT0}, s{sT1}
    s_and_b32 s{sT0}, s{sX}, 1
    s_mul_i32 s{sT0}, s{sT0}, 7
    s_lshr_b32 s{sT2}, s{sJ}, 2
    s_add_u32 s{sFB}, s{sT0}, s{sT2}
    s_lshl_b32 s{sT1}, s{sT1}, 1
    s_add_u32 s{sKC0}, s{sT1}, s{sT2}
    s_and_b32 s{sKC0}, s{sKC0}, 7
    ''')
    swz_addr(p,vX0,1024,f'v_lshrrev_b32 v15, 4, v{vLANE}')
    swz_addr(p,vX1,1024,f'v_lshrrev_b32 v15, 4, v{vLANE}\nv_add_u32 v15, 4, v15')
    swz_addr(p,vW,F*2,f'v_bfe_u32 v15, v{vLANE}, 4, 1\nv_lshlrev_b32 v15, 2, v15')

def x_soff(p, i, dst):
    p(f'''
    s_add_u32 s{sT0}, s{sKC0}, {i}
    s_and_b32 s{sT0}, s{sT0}, 7
    s_lshl_b32 s{sT0}, s{sT0}, 7
    s_add_u32 s{dst}, s{sXO}, s{sT0}
    ''')
def dma_X(p, vm, i):
    x_soff(p,i,sT1)
    p(f's_mov_b32 m0, s{sT4}' if False else f's_add_u32 m0, s{sT5}, {XR+(i&1)*16384}')
    for q in range(4):
        if q: p(f's_add_u32 m0, m0, 1024\ns_add_u32 s{sT1}, s{sT1}, 8192')
        p(f'buffer_load_dwordx4 v{vX0 if q%2==0 else vX1}, s[{SRD_XB}:{SRD_XB+3}], s{sT1} offen lds')
    vm.issue(('X',i),4)
def dma_W(p, vm, w):
    ps,i=w>>3,w&7
    p(f'''
    s_add_u32 s{sT0}, s{sKC0}, {i}
    s_and_b32 s{sT0}, s{sT0}, 7
    s_mul_i32 s{sT0}, s{sT0}, {64*F*2}
    s_add_u32 s{sT1}, s{sWO}, s{sT0}
    ''')
    if ps: p(f's_add_u32 s{sT1}, s{sT1}, 128')
    p(f's_add_u32 m0, s{sT4}, {WR+(w&3)*8192}')
    p(f'buffer_load_dwordx4 v{vW}, s[{SRD_W1}:{SRD_W1+3}], s{sT1} offen lds')
    p(f's_add_u32 m0, m0, 1024\ns_add_u32 s{sT1}, s{sT1}, {8*F*2}')
    p(f'buffer_load_dwordx4 v{vW}, s[{SRD_W1}:{SRD_W1+3}], s{sT1} offen lds')
    vm.issue(('W',w),2)

def rd_A(p, w, q, buf):
    for mt in range(2):
        for hh in range(2):
            r=AF+8*buf+4*mt+2*hh
            p(f'ds_read_b64_tr_b16 v[{r}:{r+1}], v{vA[mt]} offset:{(w&3)*8192+q*2048+hh*512}')
def rd_B(p, i):
    for q in range(4):
        r=XF+16*i+4*q
        p(f'ds_read_b128 v[{r}:{r+3}], v{vB[q]} offset:{(i&1)*16384}')
def mf32(p,d,a,b,c=True):
    cc=f'v[{d}:{d+15}]' if c else '0'
    p(f'v_mfma_f32_32x32x16_bf16 v[{d}:{d+15}], v[{a}:{a+3}], v[{b}:{b+3}], {cc}')

def mish_pair(h, T, E, Dn, out):
    return [
      f'v_pk_mul_f32 v[{T}:{T+1}], v[{h}:{h+1}], s[{sLOG2E}:{sLOG2E+1}]',
      f'v_exp_f32 v{E}, v{T}',
      f'v_exp_f32 v{E+1}, v{T+1}',
      f'v_pk_add_f32 v[{E}:{E+1}], v[{E}:{E+1}], 1.0 op_sel_hi:[1,0]',
      f'v_pk_fma_f32 v[{Dn}:{Dn+1}], v[{E}:{E+1}], v[{E}:{E+1}], 1.0 op_sel_hi:[1,1,0]',
      f'v_rcp_f32 v{Dn}, v{Dn}',
      f'v_rcp_f32 v{Dn+1}, v{Dn+1}',
      f'v_pk_mul_f32 v[{T}:{T+1}], v[{h}:{h+1}], v[{Dn}:{Dn+1}]',
      f'v_pk_fma_f32 v[{T}:{T+1}], v[{T}:{T+1}], -2.0, v[{h}:{h+1}] op_sel_hi:[1,0,1]',
      f'v_cvt_pk_bf16_f32 v{out}, v{T}, v{T+1}',
    ]
def mish_stream(ps):
    quads=[]
    for mt in range(2):
        for gq in range(4):
            h=ACC[ps]+16*mt+4*gq
            t=16+8*((4*mt+gq)&1)*2
            o=t+12
            a=mish_pair(h,t,t+2,t+4,o); b=mish_pair(h+2,t+6,t+8,t+10,o+1)
            l=[]
            for x,y in zip(a,b): l+= [x,y]
            cq=4*mt+gq
            l.append(f'v_xor_b32 v{t}, {cq*16}, v{vSW}')
            l.append(f'ds_write_b64 v{t}, v[{o}:{o+1}]')
            quads.append(l)
    return quads

def act_store(p, vm, ps):
    p(f'''
    s_lshr_b32 s{sT0}, s{sWV}, 1
    s_lshl_b32 s{sT1}, s{sRB}, 1
    s_add_u32 s{sT0}, s{sT0}, s{sT1}
    s_mul_i32 s{sT0}, s{sT0}, {ACT_RT}
    s_lshl_b32 s{sT1}, s{sFB}, 14
    s_add_u32 s{sT0}, s{sT0}, s{sT1}
    s_and_b32 s{sT1}, s{sWV}, 1
    s_lshl_b32 s{sT1}, s{sT1}, 12
    s_add_u32 s{sT0}, s{sT0}, s{sT1}
    s_add_u32 s{sT0}, s{sT0}, {WS_ACT+ps*8192}
    s_waitcnt lgkmcnt(0)
    ''')
    for q in range(4): p(f'ds_read_b128 v[{16+4*q}:{19+4*q}], v{vSR} offset:{q*1024}')
    for q in range(4):
        p(f's_waitcnt lgkmcnt({3-q})')
        p(f'buffer_store_dwordx4 v[{16+4*q}:{19+4*q}], v{vST}, {WS()}, s{sT0} offen offset:{q*1024} sc1')
    vm.issue(('S',ps),4)

def m_g1(p, before_lds=None, after_act0=None):
    vm=VM(p)
    m_g1_setup(p)
    p(f'''
    s_lshl_b32 s{sT0}, s{sRB}, 7
    s_lshl_b32 s{sT1}, s{sWV}, 5
    s_add_u32 s{sT0}, s{sT0}, s{sT1}
    s_lshl_b32 s{sXO}, s{sT0}, 10
    s_lshl_b32 s{sT0}, s{sWV}, 4
    s_mul_i32 s{sT0}, s{sT0}, {F*2}
    s_lshl_b32 s{sT1}, s{sFB}, 8
    s_add_u32 s{sWO}, s{sT0}, s{sT1}
    s_lshl_b32 s{sT5}, s{sWV}, 12
    s_lshl_b32 s{sT4}, s{sWV}, 11
    ''')
    dma_X(p,vm,0); dma_W(p,vm,0); dma_X(p,vm,1); dma_W(p,vm,1); dma_W(p,vm,2)
    p(f'''
    v_and_b32 v14, 31, v{vLANE}
    v_lshlrev_b32 v14, 1, v14
    s_lshl_b32 s{sT0}, s{sFB}, 8
    v_add_u32 v14, s{sT0}, v14
    v_mov_b32 v15, 0x7ff00000
    v_cmp_gt_u32 vcc, 32, v{vLANE}
    v_cndmask_b32 v14, v15, v14, vcc
    ''')
    for k in range(4):
        p(f'buffer_load_ushort v{AF+4*k}, v14, s[{SRD_B1}:{SRD_B1+3}], 0 offen offset:{64*k}')
    vm.issue('B',4)
    for k in range(4):
        for r in range(1,4): p(f'v_mov_b32 v{AF+4*k+r}, 0')
    p('v_mov_b32 v32, 0x3f80\nv_mov_b32 v33, 0\nv_mov_b32 v34, 0\nv_mov_b32 v35, 0')
    b_addr(p,vB,sT5)
    a_addr(p,vA[0],0,WR); a_addr(p,vA[1],1,WR)
    p(f'''
    v_and_b32 v14, 31, v{vLANE}
    v_and_b32 v15, 7, v14
    v_lshlrev_b32 v15, 4, v15
    v_lshl_add_u32 v15, v14, 7, v15
    v_lshrrev_b32 v14, 5, v{vLANE}
    v_lshl_add_u32 v15, v14, 3, v15
    v_add_u32 v{vSW}, s{sT5}, v15
    v_lshrrev_b32 v14, 3, v{vLANE}
    v_and_b32 v15, 7, v{vLANE}
    v_xor_b32 v15, v15, v14
    v_lshlrev_b32 v15, 4, v15
    v_lshl_add_u32 v15, v14, 7, v15
    v_add_u32 v{vSR}, s{sT5}, v15
    v_lshlrev_b32 v{vST}, 4, v{vLANE}
    ''')
    if before_lds: before_lds(p)
    vm.wait(['B'])
    for ps in range(2):
        for mt in range(2):
            mf32(p,ACC[ps]+16*mt,AF+4*(2*ps+mt),32,c=False)
    p('s_barrier')
    rd_B(p,0); rd_A(p,0,0,0)
    mq=[]
    nb=0
    first=True
    for w in range(16):
        ps,i=w>>3,w&7
        if STAGE_HOOK: STAGE_HOOK(p,w)
        if w==8:
            for l in mish_stream(0): mq.append(l)
        for q in range(4):
            g=4*w+q
            buf=g&1
            if q<3:
                rd_A(p,w,q+1,buf^1); nread=4
            else:
                nread=0
                if w<15:
                    need=[('W',w+1)]+([('X',w+1)] if w+1<8 else [])
                    vm.wait(need)
                    p('s_barrier')
                    if w+3<16: dma_W(p,vm,w+3)
                    if w+1<8: rd_B(p,w+1); nread+=4
                    rd_A(p,w+1,0,buf^1); nread+=4
            p(f's_waitcnt lgkmcnt({nread})')
            for mt in range(2):
                mf32(p,ACC[ps]+16*mt,AF+8*buf+4*mt,XF+16*i+4*q)
            if q==0 and ps==0 and i+2<8:
                dma_X(p,vm,i+2)
            if mq and (g&1)==1:
                l=mq.pop(0)
                for ins in l: p(ins)
                if not mq:
                    act_store(p,vm,0)
    if after_act0: after_act0(p,vm)
    for l in mish_stream(1):
        for ins in l: p(ins)
    act_store(p,vm,1)
    return vm

AR=0; W2R=32768
vAc0,vAc1,vW2=2,3,4
vB2=[5,6,7,8]; vA2=9
G2F=16
G2ACC=96
def m_g2_setup(p):
    p(f'''
    s_lshl_b32 s{sRT}, s{sX}, 2
    s_and_b32 s{sT0}, s{sJ}, 3
    s_add_u32 s{sRT}, s{sRT}, s{sT0}
    s_lshr_b32 s{sCT}, s{sJ}, 2
    s_mul_i32 s{sT1}, s{sCT}, 7
    s_lshr_b32 s{sT1}, s{sT1}, 2
    s_mul_i32 s{sT0}, s{sT0}, 3
    s_add_u32 s{sFBI}, s{sT1}, s{sT0}
    s_cmp_ge_u32 s{sFBI}, 14
    s_cselect_b32 s{sT0}, 14, 0
    s_sub_u32 s{sFBI}, s{sFBI}, s{sT0}
    s_cmp_ge_u32 s{sFBI}, 14
    s_cselect_b32 s{sT0}, 14, 0
    s_sub_u32 s{sFBI}, s{sFBI}, s{sT0}
    s_mov_b32 s{sLATE}, 0
    s_mov_b32 s{sIT}, 0
    s_mul_i32 s{sACTB}, s{sRT}, {ACT_RT}
    s_lshl_b32 s{sT0}, s{sWV}, 11
    s_add_u32 s{sACTB}, s{sACTB}, s{sT0}
    s_add_u32 s{sACTB}, s{sACTB}, {WS_ACT}
    s_lshl_b32 s{sW2B}, s{sWV}, 14
    s_lshl_b32 s{sT0}, s{sCT}, 7
    s_add_u32 s{sW2B}, s{sW2B}, s{sT0}
    s_lshl_b32 s{sT4}, s{sWV}, 11
    ''')
    p(f'''
    v_lshrrev_b32 v15, 4, v{vLANE}
    v_and_b32 v16, 7, v{vLANE}
    v_xor_b32 v14, v16, v15
    v_lshlrev_b32 v14, 4, v14
    v_lshrrev_b32 v17, 3, v{vLANE}
    v_lshl_add_u32 v{vAc0}, v17, 7, v14
    v_add_u32 v15, 4, v15
    v_xor_b32 v14, v16, v15
    v_lshlrev_b32 v14, 4, v14
    v_lshl_add_u32 v{vAc1}, v17, 7, v14
    ''')
    swz_addr(p,vW2,1024,f'v_bfe_u32 v15, v{vLANE}, 4, 1\nv_lshlrev_b32 v15, 2, v15')
    p(f'''
    s_lshr_b32 s{sT0}, s{sWV}, 1
    s_lshl_b32 s{sT0}, s{sT0}, 12
    ''')
    b_addr(p,vB2,sT0)
    p(f's_and_b32 s{sT1}, s{sWV}, 1')
    a_addr(p,vA2,f's{sT1}',W2R)

def g2_dma(p, slot):
    p(f'''
    s_lshl_b32 s{sT0}, s{sFBI}, 1
    s_add_u32 s{sT0}, s{sT0}, s{sLATE}           ; kc
    s_lshl_b32 s{sT1}, s{sT0}, 13
    s_add_u32 s{sT1}, s{sT1}, s{sACTB}
    s_add_u32 m0, s{sT4}, {AR+slot*8192}
    s_lshl_b32 s{sT0}, s{sT0}, 16
    buffer_load_dwordx4 v{vAc0}, {WS()}, s{sT1} offen sc1 lds
    s_add_u32 m0, m0, 1024
    s_add_u32 s{sT1}, s{sT1}, 1024
    s_add_u32 s{sT0}, s{sT0}, s{sW2B}
    buffer_load_dwordx4 v{vAc1}, {WS()}, s{sT1} offen sc1 lds
    s_add_u32 m0, s{sT4}, {W2R+slot*8192}
    s_add_u32 s{sFBI}, s{sFBI}, 1
    buffer_load_dwordx4 v{vW2}, s[{SRD_W2}:{SRD_W2+3}], s{sT0} offen lds
    s_add_u32 m0, m0, 1024
    s_add_u32 s{sT0}, s{sT0}, 8192
    s_cmp_eq_u32 s{sFBI}, 14
    buffer_load_dwordx4 v{vW2}, s[{SRD_W2}:{SRD_W2+3}], s{sT0} offen lds
    s_cselect_b32 s{sFBI}, 0, s{sFBI}
    ''')
def g2_reads(p, slot, buf):
    for q in range(4):
        r=G2F+32*buf+8*q
        for hh in range(2):
            p(f'ds_read_b64_tr_b16 v[{r+2*hh}:{r+2*hh+1}], v{vA2} offset:{slot*8192+q*2048+hh*512}')
        p(f'ds_read_b128 v[{r+4}:{r+7}], v{vB2[q]} offset:{slot*8192}')

def m_g2(p, name, poll_late=None):
    for s_ in range(4): g2_dma(p,s_)
    for r in range(16): p(f'v_mov_b32 v{G2ACC+r}, 0')
    p('s_waitcnt vmcnt(12)\ns_barrier')
    g2_reads(p,0,0)
    p(f'{name}_g2loop:')
    if ITER_HOOK: ITER_HOOK(p)
    for st in range(4):
        p('s_waitcnt vmcnt(8) lgkmcnt(0)\ns_barrier')
        if st==2:
            lab=p.label('nl')
            p(f's_cmp_eq_u32 s{sIT}, 2\ns_cbranch_scc0 {lab}')
            if poll_late: poll_late(p)
            p(f's_mov_b32 s{sLATE}, 1\n{lab}:')
        if st==0:
            lab=p.label('tl')
            p(f'''s_cmp_eq_u32 s{sIT}, 6
            s_cbranch_scc0 {lab}
            v_mov_b32 v{vAc0}, 0x7ff00000
            v_mov_b32 v{vAc1}, 0x7ff00000
            v_mov_b32 v{vW2}, 0x7ff00000
            {lab}:''')
        g2_dma(p,st)
        g2_reads(p,(st+1)&3,(st+1)&1)
        for q in range(4):
            r=G2F+32*(st&1)+8*q
            mf32(p,G2ACC,r,r+4)
    p(f'''
    s_add_u32 s{sIT}, s{sIT}, 1
    s_cmp_lt_u32 s{sIT}, 7
    s_cbranch_scc1 {name}_g2loop
    s_waitcnt lgkmcnt(0)
    ''')

def m_final_loads(p):
    p(f'''
    s_lshr_b32 s{sT0}, s{sWV}, 1
    s_lshl_b32 s{sT0}, s{sT0}, 5
    s_lshl_b32 s{sT1}, s{sRT}, 6
    s_add_u32 s{sT0}, s{sT0}, s{sT1}
    v_and_b32 v14, 31, v{vLANE}
    v_add_u32 v14, s{sT0}, v14                 ; row
    v_lshlrev_b32 v15, 2, v14
    v_lshlrev_b32 v14, 10, v14
    v_lshrrev_b32 v16, 5, v{vLANE}
    v_lshl_add_u32 v14, v16, 4, v14
    s_and_b32 s{sT0}, s{sWV}, 1
    s_lshl_b32 s{sT0}, s{sT0}, 6
    s_lshl_b32 s{sT1}, s{sCT}, 7
    s_add_u32 s{sT0}, s{sT0}, s{sT1}
    v_add_u32 v14, s{sT0}, v14
    s_mov_b32 s{sT1}, {WS_GA}
    s_mov_b32 s{sT2}, {WS_OMG}
    buffer_load_dwordx4 v[80:83], v14, {WS()}, s{sT1} offen sc1
    buffer_load_dwordx4 v[84:87], v14, {WS()}, s{sT1} offen offset:32 sc1
    buffer_load_dword v88, v15, {WS()}, s{sT2} offen sc1
    ''')
def m_final(p):
    a=G2ACC
    for G in range(2):
        for r in range(4):
            p(f'v_permlane32_swap_b32 v{a+8*G+r}, v{a+8*G+4+r}')
    p('s_waitcnt vmcnt(0)')
    for G in range(2):
        g=80+4*G
        for q in range(4):
            p(f'v_lshlrev_b32 v{16+2*q}, 16, v{g+q}')
            p(f'v_and_b32 v{17+2*q}, 0xffff0000, v{g+q}')
        for q in range(4):
            p(f'v_pk_fma_f32 v[{16+2*q}:{17+2*q}], v[{a+8*G+2*q}:{a+8*G+2*q+1}], v[88:89], v[{16+2*q}:{17+2*q}] op_sel_hi:[1,0,1]')
        for q in range(4):
            p(f'v_cvt_pk_bf16_f32 v{24+4*G+q}, v{16+2*q}, v{17+2*q}')
        p(f'buffer_store_dwordx4 v[{24+4*G}:{27+4*G}], v14, s[{SRD_OUT}:{SRD_OUT+3}], 0 offen offset:{32*G}')
```

```python
import gen_f as Fm
from gen_f import *
from gen_all import Stamps, post_flag, poll
p=Prog('kF')
st=Stamps(True)
R=Fm
p('''s_cmp_ge_u32 s2, 256
s_cbranch_scc1 kF_end''')
st.mark(p)
Fm.f_prologue(p)
p(f's_load_dword s{R.sTAG}, s[40:41], {WS_EPOCH}')
st.mark(p)
Fm.f_issue_loads(p)
Fm.f_const_G64(p)
Fm.f_const_R(p)
p(f's_waitcnt lgkmcnt(0)\ns_add_u32 s{R.sTAG}, s{R.sTAG}, 1')
st.mark(p)
Fm.f_phase_R(p)
st.mark(p)
p('s_waitcnt vmcnt(4) lgkmcnt(0)')
Fm.f_phase_gate(p)
Fm.f_phase_P(p)
st.mark(p)
p('s_waitcnt vmcnt(0)\ns_barrier')
st.mark(p)
post_flag(p,R,R.sU,WS_FR)
Fm.f_const_C(p)
Fm.f_colof(p)
Fm.f_C_addr(p)
st.mark(p)
poll(p,R,WS_FR,256)
st.mark(p)
Fm.f_C_all(p,'K')
st.mark(p)
p('s_waitcnt vmcnt(0)\ns_barrier')
post_flag(p,R,R.sU,WS_FC)
Fm.f_const_I(p)
Fm.f_I_addr(p)
st.mark(p)
poll(p,R,WS_FC,256)
st.mark(p)
Fm.f_I_loads(p,'K')
Fm.f_phase_I(p)
st.mark(p)
p('s_waitcnt vmcnt(0)\ns_barrier')
st.mark(p)
p(f'''
s_or_b32 s{R.sT0}, s{R.sU}, s{R.sWV}
s_cmp_lg_u32 s{R.sT0}, 0
s_cbranch_scc1 kF_noep
v_mov_b32 v14, s{R.sTAG}
v_mov_b32 v15, 0
s_mov_b64 exec, 1
buffer_store_dword v14, v15, s[{R.SRD_WS}:{R.SRD_WS+3}], 0 offen sc0 sc1
s_mov_b64 exec, -1
kF_noep:
''')
st.dump(p,R.SRD_WS,R.vLANE)
p('kF_end:\ns_endpgm')
p.finalize()
txt='; @launch kernel=kF_kernel grid=(256,1,1) block=(256,1,1) lds=81920\n.amdgcn_target "amdgcn-amd-amdhsa--gfx950"\n.text\n'+kernel_text('kF_kernel',p)+'.section .rodata,"a"\n'+kernel_desc('kF_kernel',256,256,102)
open('t9.s','w').write(txt)
print(st.n)
```

```python
import sys
import gen_m as M, gen_f as Fm
from gen_common import *
KNAME='gated_mix__spectral_gfnet__dense_activation_mish__prompt_kernel'
WS_STAMP=0x1800000
POLL_MAX=1<<15

class Stamps:
    def __init__(self,on): self.on=on; self.n=0
    def mark(self,p):
        if self.on:
            p(f's_memrealtime s[{70+2*self.n}:{71+2*self.n}]'); self.n+=1
    def dump_dbg(self,p,wg,slot0):
        lab=p.label('dd')
        p(f'''s_waitcnt lgkmcnt(0)
        s_cmp_lg_u32 s2, {wg}
        s_cbranch_scc1 {lab}
        s_load_dwordx2 s[64:65], s[0:1], 72
        s_waitcnt lgkmcnt(0)
        s_mov_b32 s56, s64
        s_and_b32 s57, s65, 0xffff
        s_mov_b32 s58, 256
        s_mov_b32 s59, 0x20000
        ''')
        for i in range(1,self.n):
            p(f's_sub_u32 s{70+2*i}, s{70+2*i}, s70\nv_mov_b32 v100, s{70+2*i}\nv_mov_b32 v99, {4*(slot0+i-1)}\nbuffer_store_dword v100, v99, s[56:59], 0 offen\ns_nop 1')
        p(f'{lab}:')
    def dump(self,p,srd,lane):
        if not self.on: return
        if self.on=='dbg':
            self.dump_dbg(p,*self.dbg); return
        p('s_waitcnt lgkmcnt(0)')
        for i in range(self.n): p(f'v_mov_b32 v{100+i}, s{70+2*i}')
        n4=(self.n+3)//4
        p(f'''
        v_mov_b32 v99, s2
        v_lshlrev_b32 v99, 6, v99
        v_cmp_eq_u32 vcc, 0, v0
        s_and_saveexec_b64 s[68:69], vcc
        s_mov_b32 s67, {WS_STAMP}
        ''')
        for q in range(n4): p(f'buffer_store_dwordx4 v[{100+4*q}:{103+4*q}], v99, s[{srd}:{srd+3}], s67 offen offset:{16*q}')
        p('s_mov_b64 exec, s[68:69]')

def post_flag(p, R, idx_sgpr, base):
    lab=p.label('pf')
    p(f'''
    s_cmp_lg_u32 s{R.sWV}, 0
    s_cbranch_scc1 {lab}
    s_lshl_b32 s{R.sT0}, s{idx_sgpr}, 2
    s_add_u32 s{R.sT0}, s{R.sT0}, {base}
    v_mov_b32 v14, s{R.sTAG}
    v_mov_b32 v15, 0
    s_mov_b64 s[{R.sMSK}:{R.sMSK+1}], exec
    s_mov_b64 exec, 1
    buffer_store_dword v14, v15, s[{R.SRD_WS}:{R.SRD_WS+3}], s{R.sT0} offen sc0 sc1
    s_mov_b64 exec, s[{R.sMSK}:{R.sMSK+1}]
    {lab}:
    ''')

def poll(p, R, base, n, base_sgpr=None, v=14):
    lab=p.label('pw'); lp=p.label('pl'); dn=p.label('pd')
    p(f'''
    s_cmp_lg_u32 s{R.sWV}, 0
    s_cbranch_scc1 {lab}
    s_mov_b32 s{R.sT1}, 0
    ''')
    if base_sgpr is None: p(f's_mov_b32 s{R.sT0}, {base}')
    else: p(f's_add_u32 s{R.sT0}, s{base_sgpr}, {base}')
    if n==256:
        p(f'''
        v_lshlrev_b32 v{v}, 4, v{R.vLANE}
        {lp}:
        buffer_load_dwordx4 v[{v+2}:{v+5}], v{v}, s[{R.SRD_WS}:{R.SRD_WS+3}], s{R.sT0} offen sc0 sc1
        s_add_u32 s{R.sT1}, s{R.sT1}, 1
        s_waitcnt vmcnt(0)
        v_xor_b32 v{v+2}, s{R.sTAG}, v{v+2}
        v_xor_b32 v{v+3}, s{R.sTAG}, v{v+3}
        v_xor_b32 v{v+4}, s{R.sTAG}, v{v+4}
        v_xor_b32 v{v+5}, s{R.sTAG}, v{v+5}
        v_or3_b32 v{v+2}, v{v+2}, v{v+3}, v{v+4}
        v_or_b32 v{v+2}, v{v+2}, v{v+5}
        v_cmp_ne_u32 vcc, 0, v{v+2}
        ''')
    else:
        p(f'''
        v_lshlrev_b32 v{v}, 2, v{R.vLANE}
        v_cmp_gt_u32 s[{R.sMSK}:{R.sMSK+1}], {n}, v{R.vLANE}
        {lp}:
        buffer_load_dword v{v+2}, v{v}, s[{R.SRD_WS}:{R.SRD_WS+3}], s{R.sT0} offen sc0 sc1
        s_add_u32 s{R.sT1}, s{R.sT1}, 1
        s_waitcnt vmcnt(0)
        v_cmp_ne_u32 vcc, s{R.sTAG}, v{v+2}
        s_and_b64 vcc, vcc, s[{R.sMSK}:{R.sMSK+1}]
        ''')
    p(f'''
    s_cbranch_vccz {dn}
    s_cmp_ge_u32 s{R.sT1}, {POLL_MAX}
    s_cbranch_scc1 {dn}
    s_sleep 6
    s_branch {lp}
    {dn}:
    {lab}:
    s_barrier
    ''')

def build(stamps=False):
    p=Prog('K')
    p(f'''
    s_cmp_ge_u32 s2, 512
    s_cbranch_scc1 K_end
    s_cmp_ge_u32 s2, 256
    s_cbranch_scc1 K_roleF
    ''')
    R=M; st=Stamps(stamps); st.dbg=(0,0)
    st.mark(p)
    M.m_prologue(p)
    p(f's_load_dword s{R.sTAG}, s[66:67], {WS_EPOCH}')
    p(f's_cmp_ge_u32 s{R.sJ}, 28\ns_cbranch_scc1 K_idleG1')
    def tagwait(p): p(f's_waitcnt lgkmcnt(0)\ns_add_u32 s{R.sTAG}, s{R.sTAG}, 1')
    def fgidx(p): p(f's_lshl_b32 s{R.sT2}, s{R.sRB}, 4\ns_add_u32 s{R.sT2}, s{R.sT2}, s{R.sFB}')
    def after0(p,vm):
        st.mark(p)
        vm.wait([('S',0)])
        p('s_barrier')
        fgidx(p); post_flag(p,R,R.sT2,WS_FG0)
    vm=M.m_g1(p, before_lds=tagwait, after_act0=after0)
    st.mark(p)
    p('s_waitcnt vmcnt(0)\ns_barrier')
    fgidx(p); post_flag(p,R,R.sT2,WS_FG1)
    p('s_branch K_g2')
    p('K_idleG1:')
    tagwait(p)
    p(f'''
    s_sub_u32 s{R.sT2}, s{R.sJ}, 28
    s_lshl_b32 s{R.sT3}, s{R.sX}, 2
    s_add_u32 s{R.sT2}, s{R.sT2}, s{R.sT3}
    s_lshr_b32 s{R.sT3}, s{R.sT2}, 1
    s_lshl_b32 s{R.sT3}, s{R.sT3}, 4
    s_and_b32 s{R.sT2}, s{R.sT2}, 1
    s_add_u32 s{R.sT2}, s{R.sT2}, s{R.sT3}
    s_add_u32 s{R.sT2}, s{R.sT2}, 14
    ''')
    post_flag(p,R,R.sT2,WS_FG1)
    p('K_g2:')
    if stamps and st.n<3:
        pass
    M.m_g2_setup(p)
    p(f's_lshr_b32 s{R.sT5}, s{R.sRT}, 1\ns_lshl_b32 s{R.sT5}, s{R.sT5}, 6')
    poll(p,R,WS_FG0,14,R.sT5)
    st.mark(p)
    def poll_late(p):
        lab=p.label('u0'); lab2=p.label('u1')
        p(f's_cmp_eq_u32 s{R.sU}, 0\ns_cbranch_scc1 {lab}')
        p(f's_lshr_b32 s{R.sT5}, s{R.sRT}, 1\ns_lshl_b32 s{R.sT5}, s{R.sT5}, 6')
        poll(p,R,WS_FG1,14,R.sT5,v=10)
        p(f's_branch {lab2}\n{lab}:')
        poll(p,R,WS_FG1,256,v=10)
        p(f'{lab2}:')
    M.m_g2(p,'K',poll_late)
    st.mark(p)
    p(f's_lshl_b32 s{R.sT5}, s{R.sX}, 7')
    poll(p,R,WS_FI,32,R.sT5)
    st.mark(p)
    M.m_final_loads(p)
    M.m_final(p)
    lab=p.label('ep')
    p(f'''
    s_or_b32 s{R.sT0}, s{R.sU}, s{R.sWV}
    s_cmp_lg_u32 s{R.sT0}, 0
    s_cbranch_scc1 {lab}
    v_mov_b32 v14, s{R.sTAG}
    v_mov_b32 v15, 0
    s_mov_b64 exec, 1
    buffer_store_dword v14, v15, s[{R.SRD_WS}:{R.SRD_WS+3}], 0 offen sc0 sc1
    s_mov_b64 exec, -1
    {lab}:
    ''')
    st.mark(p)
    st.dump(p,R.SRD_WS,R.vLANE)
    p('s_endpgm')
    R=Fm; st=Stamps(stamps); st.dbg=(256,7)
    p('K_roleF:')
    st.mark(p)
    Fm.f_prologue(p)
    p(f's_load_dword s{R.sTAG}, s[40:41], {WS_EPOCH}')
    Fm.f_issue_loads(p)
    Fm.f_const_G64(p)
    Fm.f_const_R(p)
    p(f's_waitcnt lgkmcnt(0)\ns_add_u32 s{R.sTAG}, s{R.sTAG}, 1')
    Fm.f_phase_R(p)
    p('s_waitcnt vmcnt(4) lgkmcnt(0)')
    Fm.f_phase_gate(p)
    Fm.f_phase_P(p)
    st.mark(p)
    p('s_waitcnt vmcnt(0)\ns_barrier')
    post_flag(p,R,R.sU,WS_FR)
    Fm.f_const_C(p)
    Fm.f_colof(p)
    Fm.f_C_addr(p)
    st.mark(p)
    poll(p,R,WS_FR,256)
    st.mark(p)
    Fm.f_C_all(p,'K')
    st.mark(p)
    p('s_waitcnt vmcnt(0)\ns_barrier')
    post_flag(p,R,R.sU,WS_FC)
    Fm.f_const_I(p)
    Fm.f_I_addr(p)
    poll(p,R,WS_FC,256)
    st.mark(p)
    Fm.f_I_loads(p,'K')
    Fm.f_phase_I(p)
    st.mark(p)
    p('s_waitcnt vmcnt(0)\ns_barrier')
    p(f's_lshl_b32 s{R.sT2}, s{R.sX}, 5\ns_add_u32 s{R.sT2}, s{R.sT2}, s{R.sJ}')
    post_flag(p,R,R.sT2,WS_FI)
    st.mark(p)
    st.dump(p,R.SRD_WS,R.vLANE)
    p('K_end:\ns_endpgm')
    p.finalize()
    return p

HEADER=open('gated_mix__spectral_gfnet__dense_activation_mish__prompt.s.ref').read().split('; Override launch')[0]
def write(fn, stamps=False):
    p=build(stamps)
    txt=HEADER+'; @launch grid=(512,1,1) block=(256,1,1) lds=81920\n.amdgcn_target "amdgcn-amd-amdhsa--gfx950"\n.text\n'+kernel_text(KNAME,p)+'.section .rodata,"a"\n'+kernel_desc(KNAME,256,256,96)
    open(fn,'w').write(txt)
    print(fn, len([i for i in p.items if i[0]=='ins']),'instructions')
if __name__=='__main__':
    write('fused.s',False)
    write('fused_st.s',True)
    write('fused_dbg.s','dbg')
```
